```python
import torch

def _softmax(x, axis=-1):
    return torch.softmax(x, dim=axis)

def _gelu(x):
    return torch.nn.functional.gelu(x, approximate='tanh')

def _silu(x):
    return torch.nn.functional.silu(x)

def _sigmoid(x):
    return torch.sigmoid(x)

def _layernorm(x, axis=-1, eps=1e-05):
    m = x.mean(dim=axis, keepdim=True)
    v = x.var(dim=axis, keepdim=True, unbiased=False)
    return (x - m) / torch.sqrt(v + eps)

def _scatter_add(tgt, idx, src, axis=0):
    return tgt.clone().index_add_(axis, idx, src)

def _segment_sum(src, seg, n):
    out = torch.zeros((n,) + src.shape[1:], dtype=src.dtype)
    return out.index_add_(0, seg, src)

def _pad(x, pw):
    flat = tuple((v for pair in reversed(pw) for v in pair))
    return torch.nn.functional.pad(x, flat)
kernel_name = 'recurrent_scan__grouped_kv_mqa__mixer_gmlp__prompt'

def setup_inputs():

    _w = lambda a: (lambda t: t.to(torch.bfloat16) if t.is_floating_point() else t)(torch.as_tensor(a))

    def _A_setup():
        B, S, D, H = (1, 2048, 640, 32)
        Dh = D // H
        return {'x': _w((lambda *s: torch.randn(*s, dtype=torch.bfloat16) * 0.05)(B, S, D)), 'wq': _w((lambda *s: torch.randn(*s, dtype=torch.bfloat16) * 0.05)(D, H * Dh)), 'wk': _w((lambda *s: torch.randn(*s, dtype=torch.bfloat16) * 0.05)(D, Dh)), 'wv': _w((lambda *s: torch.randn(*s, dtype=torch.bfloat16) * 0.05)(D, Dh)), 'wo': _w((lambda *s: torch.randn(*s, dtype=torch.bfloat16) * 0.05)(H * Dh, D))}
    _A_in = _A_setup()

    def _B_setup():
        B, S, D, F = (1, 2048, 640, 1728)
        Fh = F // 2
        return {'x': _w((lambda *s: torch.randn(*s, dtype=torch.bfloat16) * 0.05)(B, S, D)), 'w_in': _w((lambda *s: torch.randn(*s, dtype=torch.bfloat16) * 1.6)(D, 2 * Fh)), 'w_sp': _w(0.01 * (lambda *s: torch.randn(*s, dtype=torch.bfloat16) * 1.6)(S, S)), 'b_sp': _w(1.0 + 0.01 * (lambda *s: torch.randn(*s, dtype=torch.bfloat16) * 0.05)(S)), 'w_out': _w((lambda *s: torch.randn(*s, dtype=torch.bfloat16) * 0.05)(Fh, D))}
    _B_in = _B_setup()
    return {'A_x': _A_in['x'], 'A_wq': _A_in['wq'], 'A_wk': _A_in['wk'], 'A_wv': _A_in['wv'], 'A_wo': _A_in['wo'], 'B_x': _B_in['x'], 'B_w_in': _B_in['w_in'], 'B_w_sp': _B_in['w_sp'], 'B_b_sp': _B_in['b_sp'], 'B_w_out': _B_in['w_out']}

def reference(A_x, A_wq, A_wk, A_wv, A_wo, B_x, B_w_in, B_w_sp, B_b_sp, B_w_out):

    def _A_ref(x, wq, wk, wv, wo):
        B, S, D = x.shape
        H = 32
        Dh = D // H
        q = (lambda x, *d: x.permute(*d))((x @ wq).reshape(B, S, H, Dh), 0, 2, 1, 3)
        k = x @ wk
        v = x @ wv
        scores = torch.einsum('bhqd,bkd->bhqk', q, k) * Dh ** (-0.5)
        p = _softmax(scores, axis=-1)
        o = torch.einsum('bhqk,bkd->bhqd', p, v)
        return (lambda x, *d: x.permute(*d))(o, 0, 2, 1, 3).reshape(B, S, H * Dh) @ wo

    def _B_ref(x, w_in, w_sp, b_sp, w_out):
        B, S, D = x.shape
        F = w_in.shape[-1]
        Fh = F // 2
        z = _gelu(torch.einsum('bsd,df->bsf', x, w_in))
        z1 = z[..., :Fh].clone()
        z2 = _layernorm(z[..., Fh:], axis=-1)
        g = torch.einsum('ts,bsf->btf', w_sp, z2) + b_sp[None, :, None]
        return torch.einsum('bsf,fd->bsd', z1 * g, w_out)
    x = A_x
    xn = _layernorm(x, axis=-1)
    s = _A_ref(xn, A_wq, A_wk, A_wv, A_wo)
    g = _silu(_B_ref(xn, B_w_in, B_w_sp, B_b_sp, B_w_out))
    return x + s * g
```

```python
import re

TRANS = ("v_exp_f32", "v_log_f32", "v_rcp_f32", "v_rsq_f32", "v_sqrt_f32", "v_sin_f32", "v_cos_f32",
         "v_exp_f16", "v_rcp_iflag_f32")


def _regs(tok):
    tok = tok.strip()
    tok = tok.replace("|", "").replace("abs(", "").replace(")", "")
    if tok.startswith("-"):
        tok = tok[1:]
    m = re.fullmatch(r"([vsa])\[(\d+):(\d+)\]", tok)
    if m:
        return {(m.group(1), i) for i in range(int(m.group(2)), int(m.group(3)) + 1)}
    m = re.fullmatch(r"([vsa])(\d+)", tok)
    if m:
        return {(m.group(1), int(m.group(2)))}
    if tok in ("vcc", "vcc_lo", "vcc_hi"):
        return {("x", "vcc")}
    if tok in ("exec", "exec_lo", "exec_hi"):
        return {("x", "exec")}
    if tok == "m0":
        return {("x", "m0")}
    return set()


class Ins:
    __slots__ = ("text", "op", "w", "r", "kind", "passes", "cregs", "abregs", "states", "target", "label",
                 "dpp", "lanesel", "sdata", "lds_dma", "maskread")

    def __init__(self, text):
        self.text = text
        t = text.split(";")[0].strip()
        self.label = None
        self.target = None
        self.w = set(); self.r = set(); self.cregs = set(); self.abregs = set()
        self.kind = "other"; self.passes = 0; self.states = 1; self.dpp = False
        self.lanesel = set(); self.sdata = set(); self.lds_dma = False; self.maskread = set()
        self.op = ""
        if not t or t.startswith("."):
            self.kind = "dir"; self.states = 0
            return
        if t.endswith(":"):
            self.kind = "label"; self.label = t[:-1]; self.states = 0
            return
        parts = t.split(None, 1)
        op = parts[0]; self.op = op
        rest = parts[1] if len(parts) > 1 else ""
        ops = []; cur = ""; depth = 0
        for ch in rest:
            if ch == "[": depth += 1
            if ch == "]": depth -= 1
            if ch == "," and depth == 0:
                ops.append(cur.strip()); cur = ""
            else:
                cur += ch
        if cur.strip(): ops.append(cur.strip())
        mods = ""
        if ops:
            last = ops[-1].split(None, 1)
            if len(last) > 1:
                ops[-1] = last[0]; mods = last[1]
        R = [_regs(o) for o in ops]
        if op == "s_nop":
            self.kind = "nop"; self.states = int(ops[0], 0) + 1
        elif op.startswith("s_cbranch") or op == "s_branch":
            self.kind = "branch"; self.target = ops[0]
            if "vcc" in op: self.r = {("x", "vcc")}
            if "exec" in op: self.r = {("x", "exec")}
        elif op == "s_endpgm":
            self.kind = "end"
        elif op.startswith("v_mfma"):
            self.kind = "mfma"
            self.passes = 8 if "32x32" in op else 4
            if "_2b" in op: self.passes = 16
            self.w = R[0]; self.abregs = R[1] | R[2]; self.cregs = R[3]; self.r = self.abregs | self.cregs
        elif op.startswith("v_"):
            self.kind = "valu"
            base = op.replace("_e32", "").replace("_e64", "").replace("_dpp", "").replace("_sdwa", "")
            self.dpp = op.endswith("_dpp")
            if base.startswith("v_permlane"):
                self.kind = "valu"; self.w = R[0] | R[1]; self.r = R[0] | R[1]
            elif base in ("v_add_co_u32", "v_sub_co_u32"):
                self.w = R[0] | R[1]; self.r = set().union(*R[2:])
            elif base in ("v_addc_co_u32", "v_subb_co_u32"):
                self.w = R[0] | R[1]; self.r = set().union(*R[2:])
            elif base.startswith("v_cmpx"):
                self.w = R[0] | {("x", "exec")}; self.r = set().union(*R[1:])
            else:
                self.w = R[0]; self.r = set().union(*R[1:]) if len(R) > 1 else set()
                if base in ("v_fmac_f32", "v_dot2c_f32_bf16", "v_writelane_b32") or self.dpp:
                    self.r |= R[0]
                if base == "v_cndmask_b32":
                    self.maskread = R[3] if len(R) > 3 else {("x", "vcc")}
                    self.r |= self.maskread
                if base in ("v_readlane_b32", "v_writelane_b32"):
                    self.lanesel = R[2]
        elif op.startswith("ds_"):
            self.kind = "ds"
            if op.startswith("ds_read") or "_rtn" in op or op.startswith("ds_bpermute") or op.startswith("ds_swizzle"):
                self.w = R[0]; self.r = set().union(*R[1:]) if len(R) > 1 else set()
            else:
                self.r = set().union(*R)
        elif op.startswith("buffer_") or op.startswith("global_"):
            self.kind = "vmem"
            if " lds" in (" " + mods) or "load_lds" in op:
                self.lds_dma = True
                self.r = set().union(*R) | {("x", "m0")}
            elif "_load" in op:
                self.w = R[0]; self.r = set().union(*R[1:])
            elif "buffer_store" in op or "buffer_atomic" in op:
                self.r = set().union(*R)
                if "x3" in op or "x4" in op: self.sdata = R[0]
            elif "global_store" in op:
                self.r = set().union(*R)
                if "x3" in op or "x4" in op: self.sdata = R[1]
            else:
                self.r = set().union(*R) if R else set()
        elif op.startswith("s_"):
            self.kind = "salu"
            if op in ("s_waitcnt", "s_barrier", "s_sleep", "s_setprio"):
                pass
            elif op.startswith("s_cmp") or op.startswith("s_bitcmp"):
                self.r = set().union(*R)
            elif op.startswith("s_load") or op.startswith("s_mem") or op.startswith("s_getreg") or op.startswith("s_getpc"):
                self.w = R[0]; self.r = set().union(*R[1:]) if len(R) > 1 else set()
            else:
                self.w = set(R[0]) if R else set()
                self.r = set().union(*R[1:]) if len(R) > 1 else set()
                if "saveexec" in op:
                    self.w |= {("x", "exec")}; self.r |= {("x", "exec")}
        else:
            raise ValueError("unknown instruction: " + text)


def _isv(regs):
    return {x for x in regs if x[0] in ("v", "a")}


def _iss(regs):
    return {x for x in regs if x[0] == "s" or x == ("x", "vcc")}


def need(p, c):
    n = 0
    if p.kind == "valu":
        wv = _isv(p.w); ws = _iss(p.w)
        base = p.op.replace("_e32", "").replace("_e64", "")
        if c.kind == "mfma" and wv & c.r: n = max(n, 2)
        if c.kind == "valu":
            if c.dpp and wv & c.r: n = max(n, 2)
            if c.op.startswith("v_permlane") and wv & c.r: n = max(n, 2)
            if c.op.startswith("v_readlane") or c.op.startswith("v_readfirstlane"):
                if wv & c.r: n = max(n, 1)
            if base in TRANS and c.op.replace("_e32", "").replace("_e64", "") not in TRANS and wv & (c.r | c.w): n = max(n, 1)
            if base in TRANS and wv & c.r: n = max(n, 1)
            if base.startswith("v_dot2") and c.op != p.op and wv & (c.r | c.w): n = max(n, 3)
            if base.startswith("v_dot2") and c.op == p.op and wv & c.r:
                toks = c.text.split(";")[0].split(",")
                ab = _regs(toks[1]) | _regs(toks[2].split()[0] if len(toks) > 2 else "")
                if wv & ab: n = max(n, 3)
            if ws & c.r: n = max(n, 2)
            if ws & c.lanesel: n = max(n, 4)
            if ("x", "exec") in p.w:
                n = max(n, 5 if c.dpp else 4)
            if "_sdwa" in p.op and wv & (c.r | c.w): n = max(n, 1)
        if base in TRANS and c.kind in ("ds", "vmem", "mfma") and wv & c.r: n = max(n, 2 if c.kind == "mfma" else 1)
        if base.startswith("v_dot2") and c.kind in ("ds", "vmem", "mfma") and wv & c.r: n = max(n, 3)
        if c.kind == "vmem" and ws & c.r: n = max(n, 5)
        if c.kind in ("salu", "branch") and ws & c.r: n = max(n, 1)
        if c.kind == "mfma" and ("x", "exec") in p.w: n = max(n, 4)
    elif p.kind == "mfma":
        P = p.passes
        full = {4: 8, 8: 12, 16: 20}[P]
        if c.kind == "mfma":
            if p.w & c.abregs: n = max(n, full)
            if p.w & c.cregs:
                if p.w == c.cregs and P == c.passes: pass
                else: n = max(n, {4: 6, 8: 10, 16: 18}[P])
            elif p.w & c.w:
                n = max(n, {4: 6, 8: 10, 16: 18}[P])
        elif c.kind in ("valu", "ds", "vmem"):
            if p.w & (c.r | c.w): n = max(n, full)
            if c.kind == "valu" and p.cregs & c.w: n = max(n, {4: 3, 8: 7, 16: 15}[P])
    elif p.kind == "vmem":
        if p.sdata and c.kind in ("valu", "mfma", "ds", "vmem") and p.sdata & c.w: n = max(n, 2)
    elif p.kind == "salu":
        if ("x", "m0") in p.w and c.kind == "vmem" and c.lds_dma: n = max(n, 1)
    return n


MAXD = 21


def pad_hazards(lines, verbose=False):
    ins = [Ins(l) for l in lines]
    total = 0
    while True:
        labels = {x.label: i for i, x in enumerate(ins) if x.kind == "label"}
        fix = {}

        def walk(p, start, dist, seen):
            i = start
            while i < len(ins) and dist < MAXD:
                c = ins[i]
                if c.kind in ("dir", "label"):
                    i += 1; continue
                req = need(p, c)
                if req > dist:
                    fix[i] = max(fix.get(i, 0), req - dist)
                if c.kind == "end": return
                dist += c.states
                if c.kind == "branch":
                    key = (c.target, dist)
                    if key not in seen:
                        seen.add(key)
                        walk(p, labels[c.target], dist, seen)
                    if c.op == "s_branch": return
                i += 1

        for i, p in enumerate(ins):
            if p.kind in ("valu", "mfma") or (p.kind == "vmem" and p.sdata) or (p.kind == "salu" and ("x", "m0") in p.w):
                walk(p, i + 1, 0, set())
        if not fix: break
        out = []; last = -100
        for i, x in enumerate(ins):
            if i in fix and i - last > MAXD:
                k = fix[i]
                if verbose: print("pad", k, "before", x.text.strip())
                total += k
                while k > 0:
                    out.append(Ins("    s_nop %d" % (min(k, 16) - 1))); k -= min(k, 16)
                last = i
            out.append(x)
        ins = out
    return [x.text for x in ins], total


class Asm:
    def __init__(self):
        self.lines = []
        self.nlab = 0
        self.vm = 0

    def __call__(self, s):
        for l in s.split("\n"):
            l = l.rstrip()
            if not l.strip(): continue
            t = l.strip()
            self.lines.append(t if t.endswith(":") else "    " + t)

    def label(self, base="L"):
        self.nlab += 1
        return "%s_%d" % (base, self.nlab)

    def vmem(self, s):
        self(s); self.vm += 1
        return self.vm

    def wait_vm(self, opid):
        n = self.vm - opid
        assert n >= 0
        self("s_waitcnt vmcnt(%d)" % min(n, 63))


def vr(a, n=1):
    return "v%d" % a if n == 1 else "v[%d:%d]" % (a, a + n - 1)


def sr(a, n=1):
    return "s%d" % a if n == 1 else "s[%d:%d]" % (a, a + n - 1)
```

```python
import sys, struct, argparse
from asmlib import Asm, pad_hazards, vr, sr

KNAME = "recurrent_scan__grouped_kv_mqa__mixer_gmlp__prompt_kernel"


def f2u(x):
    return struct.unpack("<I", struct.pack("<f", x))[0]


X, WQ, WKV, WIN, WSP, BSP, WOUT, WO, OUT, WS, DBG = 8, 12, 16, 20, 24, 28, 32, 36, 40, 44, 48
sW, sG, sJ, sU0, sNU, sKVD, sKVT, sLDR = 52, 53, 54, 55, 56, 57, 58, 59
sT = [60, 61, 62, 63]
sM = 4
sCNT = 3
sX = list(range(90, 102))
STAMP0 = 64

F_K, F_V, F_H3, F_H2, F_H4, F_H5 = 0, 256, 1024, 8192, 12288, 16384
FLAG_BYTES = 20480
STATS = 0x8000
KVB = 0x40000
Z2N = 0x100000
UB = 0x500000
OB = 0x900000
STAMPS = 0xC00000
WS_BYTES = 0x1000000

RING = 81920
WKVL = 133120
QS = 133120
QP = 168
ST = 143872
PX = 114688
TRS = 98304
EXCH = 81920
MAREA = 155648
CNTS = 159744
FINX = 102400
LDS_BYTES = 163840

LOG2E = 1.4426950408889634
QSCALE = (20 ** -0.5) * LOG2E
GA = -2.0 * 0.7978845608028654 * LOG2E
GB = GA * 0.044715


class Gen:
    def __init__(self, prof=False, stop=None, force_fb=False):
        self.A = Asm()
        self.prof = prof
        self.stop = stop
        self.force_fb = force_fb
        self.nstamp = 0

    def stamp(self, i):
        if self.prof:
            self.A("s_memrealtime %s" % sr(STAMP0 + 2 * i, 2))

    def srd(self, d, p, nbytes):
        A = self.A
        A("s_mov_b32 s%d, s%d" % (d, p))
        A("s_mov_b32 s%d, s%d" % (d + 1, p + 1))
        A("s_mov_b32 s%d, 0x%x" % (d + 2, nbytes))
        A("s_mov_b32 s%d, 0x00020000" % (d + 3))

    def poll(self, vaddr, soff, vtmp, srd=WS, sleep=2, code=1):
        A = self.A
        L, D = A.label("Lpoll"), A.label("Lpolld")
        A("s_mov_b32 s%d, 0x20000" % sCNT)
        A(L + ":")
        A("buffer_load_dword v%d, v%d, %s, %s offen sc1" % (vtmp, vaddr, sr(srd, 4), soff))
        A("s_waitcnt vmcnt(0)")
        A("v_cmp_ne_u32 vcc, 0, v%d" % vtmp)
        A("s_and_b64 s[6:7], vcc, s[4:5]")
        A("s_cmp_eq_u64 s[6:7], s[4:5]")
        A("s_cbranch_scc1 " + D)
        A("s_sub_u32 s%d, s%d, 1" % (sCNT, sCNT))
        A("s_cbranch_scc1 " + D)
        A("s_sleep %d" % sleep)
        A("s_branch " + L)
        A(D + ":")

    def bsync(self, idx, va, vb, n=4):
        A = self.A
        L, D = A.label("Lbs"), A.label("Lbsd")
        A("s_waitcnt lgkmcnt(0)")
        A("v_mov_b32 v%d, 0x%x" % (va, CNTS + 4 * idx))
        A("v_mov_b32 v%d, 1" % vb)
        A("s_mov_b64 exec, 1")
        A("ds_add_u32 v%d, v%d" % (va, vb))
        A("s_mov_b64 exec, -1")
        A("s_mov_b32 s%d, 0x100000" % sCNT)
        A(L + ":")
        A("ds_read_b32 v%d, v%d" % (vb, va))
        A("s_waitcnt lgkmcnt(0)")
        A("v_readfirstlane_b32 s6, v%d" % vb)
        A("s_cmp_ge_u32 s6, %d" % n)
        A("s_cbranch_scc1 " + D)
        A("s_sub_u32 s%d, s%d, 1" % (sCNT, sCNT))
        A("s_cbranch_scc1 " + D)
        A("s_sleep 1")
        A("s_branch " + L)
        A(D + ":")

    def flag_store(self, vaddr_tmp, vval, off_sreg):
        A = self.A
        A("v_mov_b32 v%d, 0" % vaddr_tmp)
        A("s_mov_b64 exec, 1")
        A.vmem("buffer_store_dword v%d, v%d, %s, s%d offen sc1" % (vval, vaddr_tmp, sr(WS, 4), off_sreg))
        A("s_mov_b64 exec, -1")

    def lane_tr(self, vg, vr_, vc):
        A = self.A
        A("v_lshrrev_b32 v%d, 4, v1" % vg)
        A("v_bfe_u32 v%d, v1, 2, 2" % vr_)
        A("v_and_b32 v%d, 3, v1" % vc)

    def addr160(self, dst, n, perm, t0, t1):
        A = self.A
        A("v_add_u32 v%d, %d, v1" % (t0, 64 * n))
        A("v_mul_u32_u24 v%d, 6554, v%d" % (t1, t0))
        A("v_lshrrev_b32 v%d, 16, v%d" % (t1, t1))
        A("v_mul_u32_u24 v%d, 10, v%d" % (dst, t1))
        A("v_sub_u32 v%d, v%d, v%d" % (t0, t0, dst))
        A("v_lshlrev_b32 v%d, 4, v%d" % (t0, t0))
        if perm:
            A("v_and_b32 v%d, 1, v%d" % (dst, t1))
            A("v_lshlrev_b32 v%d, 2, v%d" % (dst, dst))
            A("v_and_or_b32 v%d, v%d, 56, v%d" % (dst, t1, dst))
            A("v_bfe_u32 v%d, v%d, 1, 2" % (t1, t1))
            A("v_or_b32 v%d, v%d, v%d" % (t1, t1, dst))
        A("v_mul_u32_u24 v%d, 1280, v%d" % (t1, t1))
        A("v_add_u32 v%d, v%d, v%d" % (dst, t1, t0))

    def wave_max(self, v, t):
        A = self.A
        for m in ("row_shr:1", "row_shr:2", "row_shr:4", "row_shr:8"):
            A("v_max_f32_dpp v%d, v%d, v%d %s row_mask:0xf bank_mask:0xf" % (v, v, v, m))
        A("v_max_f32_dpp v%d, v%d, v%d row_bcast:15 row_mask:0xa bank_mask:0xf" % (v, v, v))
        A("v_max_f32_dpp v%d, v%d, v%d row_bcast:31 row_mask:0xc bank_mask:0xf" % (v, v, v))

    def prologue(self):
        A = self.A
        A("s_cmp_ge_u32 s2, 256")
        A("s_cbranch_scc1 L_end")
        A("s_load_dwordx16 s[64:79], s[0:1], 0")
        A("s_load_dwordx8 s[80:87], s[0:1], 64")
        A("s_load_dwordx2 s[88:89], s[0:1], 96")
        A("v_lshrrev_b32 v4, 6, v0")
        A("v_and_b32 v1, 63, v0")
        A("v_readfirstlane_b32 s%d, v4" % sW)
        A("v_and_b32 v2, 31, v0")
        A("v_bfe_u32 v3, v0, 5, 1")
        A("s_and_b32 s60, s2, 7")
        A("s_lshr_b32 s61, s2, 3")
        A("s_lshr_b32 s%d, s60, 1" % sG)
        A("s_lshl_b32 s%d, s%d, 3" % (sG, sG))
        A("s_lshr_b32 s62, s61, 2")
        A("s_add_u32 s%d, s%d, s62" % (sG, sG))
        A("s_and_b32 s%d, s60, 1" % sJ)
        A("s_lshl_b32 s%d, s%d, 2" % (sJ, sJ))
        A("s_and_b32 s62, s61, 3")
        A("s_add_u32 s%d, s%d, s62" % (sJ, sJ))
        A("s_mov_b32 s6, 0x0B070400")
        A("s_mov_b32 s7, 0x1815120E")
        A("s_lshl_b32 s62, s%d, 3" % sJ)
        A("s_lshr_b64 s[6:7], s[6:7], s62")
        A("s_and_b32 s%d, s6, 0xff" % sU0)
        A("s_lshr_b32 s62, 0x15, s%d" % sJ)
        A("s_and_b32 s62, s62, 1")
        A("s_add_u32 s%d, s62, 3" % sNU)
        A("s_lshl_b32 s62, s%d, 2" % sJ)
        A("s_lshr_b32 s62, 0x06205010, s62")
        A("s_and_b32 s%d, s62, 3" % sKVD)
        A("s_bfe_u32 s%d, s62, 0x10002" % sKVT)
        A("s_cmp_eq_u32 s%d, 1" % sKVT)
        A("s_cselect_b32 s%d, 3, 7" % sLDR)
        A("v_lshrrev_b32 v4, 3, v1")
        A("v_mul_u32_u24 v4, 1280, v4")
        A("s_and_b32 s62, s%d, 1" % sW)
        A("s_lshl_b32 s62, s62, 2")
        A("v_lshrrev_b32 v5, 4, v1")
        A("v_or_b32 v5, s62, v5")
        A("v_and_b32 v6, 7, v1")
        A("v_xor_b32 v5, v5, v6")
        A("v_lshl_add_u32 v4, v5, 4, v4")
        A("s_lshl_b32 s62, s%d, 3" % sG)
        A("s_add_u32 s62, s62, s%d" % sW)
        A("s_mul_i32 s63, s62, 10240")
        A("v_lshlrev_b32 v7, 4, v1")
        A("s_waitcnt lgkmcnt(0)")
        self.srd(X, 64, 2621440)
        for cg in range(10):
            A.vmem("buffer_load_dwordx4 %s, v4, %s, s63 offen offset:%d" % (vr(176 + 4 * cg, 4), sr(X, 4), 128 * cg))
        self.srd(WQ, 66, 819200)
        A("s_cmp_eq_u32 s%d, 2" % sKVD)
        A("s_cselect_b32 s%d, s70, s68" % WKV)
        A("s_cselect_b32 s%d, s71, s69" % (WKV + 1))
        A("s_mov_b32 s%d, 25600" % (WKV + 2))
        A("s_mov_b32 s%d, 0x00020000" % (WKV + 3))
        self.srd(WO, 72, 819200)
        self.srd(WIN, 76, 2211840)
        self.srd(WSP, 78, 8388608)
        self.srd(BSP, 80, 4096)
        self.srd(WOUT, 82, 1105920)
        self.srd(OUT, 84, 2621440)
        self.srd(DBG, 86, 256)
        self.srd(WS, 88, WS_BYTES)
        self.stamp(0)

    def early_duties(self):
        A = self.A
        Lnl, Lnk, Lnz, Lnp, Ld = (A.label("Le") for _ in range(5))
        A("s_cmp_eq_u32 s%d, s%d" % (sW, sLDR))
        A("s_cbranch_scc0 " + Lnl)
        for n in range(5):
            self.addr160(8 + n, n, True, 14, 15)
        A("s_mul_i32 s%d, s%d, 160" % (sX[0], sJ))
        for ch in range(5):
            self.wq_dma(ch)
        A("s_branch " + Ld)
        A(Lnl + ":")
        A("s_and_b32 s60, s%d, 3" % sW)
        A("s_cmp_eq_u32 s60, 3")
        A("s_cbranch_scc0 " + Lnk)
        A("s_cmp_eq_u32 s%d, 0" % sKVD)
        A("s_cbranch_scc1 " + Lnz)
        for n in range(25):
            A("s_mov_b32 m0, %d" % (WKVL + 1024 * n))
            A("s_mov_b32 s60, %d" % (1024 * n))
            A("buffer_load_dwordx4 v7, %s, s60 offen lds" % sr(WKV, 4))
        A("s_branch " + Ld)
        A(Lnz + ":")
        A("s_cmp_eq_u32 s2, 0")
        A("s_cbranch_scc0 " + Ld)
        for i in range(4):
            A("v_mov_b32 v%d, 0" % (8 + i))
        for n in range(FLAG_BYTES // 1024):
            A("s_mov_b32 s60, %d" % (1024 * n))
            A("buffer_store_dwordx4 v[8:11], v7, %s, s60 offen sc1" % sr(WS, 4))
        A("s_waitcnt vmcnt(0)")
        A("v_mov_b32 v12, 1")
        A("s_mov_b64 exec, 1")
        A("buffer_store_dword v12, v8, %s, 0 offen sc1" % sr(DBG, 4))
        A("s_mov_b64 exec, -1")
        A("s_branch " + Ld)
        A(Lnk + ":")
        A("s_cmp_eq_u32 s%d, 0" % sW)
        A("s_cbranch_scc0 " + Lnp)
        A("v_mov_b32 v8, 0")
        A("v_lshlrev_b32 v9, 2, v1")
        A("v_add_u32 v9, 0x%x, v9" % CNTS)
        A("ds_write_b32 v9, v8")
        A("s_branch " + Ld)
        A(Lnp + ":")
        A("s_cmp_eq_u32 s%d, 5" % sW)
        A("s_cbranch_scc0 " + Ld)
        A("s_getpc_b64 s[6:7]")
        A("L_pc:")
        A("s_lshr_b32 s60, s2, 3")
        A("s_lshl_b32 s60, s60, 10")
        A("v_add_u32 v8, s60, v7")
        A("v_add_u32 v9, 0x8000, v8")
        A("v_min_u32 v8, L_end-L_pc-16, v8")
        A("v_min_u32 v9, L_end-L_pc-16, v9")
        A("global_load_dwordx4 v[220:223], v8, s[6:7]")
        A("global_load_dwordx4 v[224:227], v9, s[6:7]")
        A(Ld + ":")

    def wq_dma(self, ch):
        A = self.A
        for n in range(10):
            A("s_mov_b32 m0, %d" % (RING + (ch % 5) * 10240 + 1024 * n))
            A("s_add_u32 s60, s%d, %d" % (sX[0], (ch * 64 + (n // 5) * 32) * 1280))
            A.vmem("buffer_load_dwordx4 v%d, %s, s60 offen lds" % (8 + n % 5, sr(WQ, 4)))

    def layernorm(self):
        A = self.A
        R = 176
        Lw, Lk, Lg = A.label("Lw"), A.label("Lw"), A.label("Lw")
        A("s_cmp_eq_u32 s%d, s%d" % (sW, sLDR))
        A("s_cbranch_scc1 " + Lw)
        A("s_and_b32 s60, s%d, 3" % sW)
        A("s_cmp_eq_u32 s60, 3")
        A("s_cselect_b32 s60, s%d, 0" % sKVD)
        A("s_cmp_lg_u32 s60, 0")
        A("s_cbranch_scc1 " + Lk)
        A("s_waitcnt vmcnt(0)")
        A("s_branch " + Lg)
        A(Lk + ":")
        A("s_waitcnt vmcnt(25)")
        A("s_branch " + Lg)
        A(Lw + ":")
        A("s_waitcnt vmcnt(50)")
        A(Lg + ":")
        self.stamp(1)
        A("s_mov_b32 s60, 0x3f803f80")
        for i in range(4):
            A("v_mov_b32 v%d, 0" % (16 + i))
            A("v_mov_b32 v%d, 0" % (20 + i))
        for i in range(40):
            A("v_dot2_f32_bf16 v%d, v%d, s60, v%d" % (16 + i % 4, R + i, 16 + i % 4))
            A("v_dot2_f32_bf16 v%d, v%d, v%d, v%d" % (20 + i % 4, R + i, R + i, 20 + i % 4))
        for b in (16, 20):
            A("v_add_f32 v%d, v%d, v%d" % (b, b, b + 1))
            A("v_add_f32 v%d, v%d, v%d" % (b + 2, b + 2, b + 3))
        for b in (16, 20):
            A("v_add_f32 v%d, v%d, v%d" % (b, b, b + 2))
        for m in ("quad_perm:[1,0,3,2]", "quad_perm:[2,3,0,1]", "row_half_mirror"):
            for b in (16, 20):
                A("v_add_f32_dpp v%d, v%d, v%d %s row_mask:0xf bank_mask:0xf" % (b, b, b, m))
        A("v_mul_f32 v16, 0x%x, v16" % f2u(1.0 / 640))
        A("v_mul_f32 v20, 0x%x, v20" % f2u(1.0 / 640))
        A("v_fma_f32 v20, -v16, v16, v20")
        A("v_max_f32 v20, 0, v20")
        A("v_add_f32 v20, 0x%x, v20" % f2u(1e-5))
        A("v_rsq_f32 v20, v20")
        A("v_mul_f32 v21, -v16, v20".replace("v_mul_f32 v21, -v16", "v_mul_f32_e64 v21, -v16"))
        A("s_mov_b32 s60, 0xffff0000")
        A("s_lshl_b32 s61, s%d, 10" % sW)
        A("v_add_u32 v22, s61, v7")
        A("v_add_u32 v23, 0x10000, v22")
        for cg in range(10):
            for i in range(4):
                r = R + 4 * cg + i; t = 24 + 2 * i
                A("v_lshlrev_b32 v%d, 16, v%d" % (t, r))
                A("v_and_b32 v%d, s60, v%d" % (t + 1, r))
            for i in range(4):
                t = 24 + 2 * i
                A("v_pk_fma_f32 %s, %s, v[20:21], v[20:21] op_sel:[0,0,1] op_sel_hi:[1,0,1]" % (vr(t, 2), vr(t, 2)))
            for i in range(4):
                r = R + 4 * cg + i; t = 24 + 2 * i
                A("v_cvt_pk_bf16_f32 v%d, v%d, v%d" % (r, t, t + 1))
            if cg < 8:
                A("ds_write_b128 v22, %s offset:%d" % (vr(R + 4 * cg, 4), 8192 * cg))
            else:
                A("ds_write_b128 v23, %s offset:%d" % (vr(R + 4 * cg, 4), 8192 * (cg - 8)))
        self.stamp(2)

    XF, WB, ACC, ACC1 = 16, 176, 208, 224
    vXA, vTR, vZ, vTZ = 240, 244, 245, 246
    Z2P = 248
    ZSTEP = {2: [0], 4: [1], 6: [2], 8: [3], 10: [4, 5, 6, 7]}

    def phaseA_setup(self):
        A = self.A
        A("s_lshr_b32 s60, s%d, 2" % sW)
        A("s_lshl_b32 s60, s60, 12")
        A("v_lshrrev_b32 v4, 3, v2")
        A("v_lshlrev_b32 v4, 10, v4")
        A("v_and_b32 v5, 7, v2")
        A("v_lshl_add_u32 v4, v5, 7, v4")
        A("v_bfe_u32 v5, v2, 1, 3")
        A("v_xor_b32 v5, v5, v3")
        A("v_lshl_add_u32 v4, v5, 4, v4")
        A("v_add_u32 v%d, s60, v4" % self.vXA)
        for k in range(1, 4):
            A("v_xor_b32 v%d, %d, v%d" % (self.vXA + k, 32 * k, self.vXA))
        A("v_lshrrev_b32 v4, 4, v1")
        A("v_lshlrev_b32 v5, 2, v4")
        A("v_and_b32 v6, 15, v1")
        A("v_xor_b32 v5, v5, v6")
        A("v_mul_u32_u24 v4, 3456, v4")
        A("v_lshl_add_u32 v%d, v5, 4, v4" % self.vZ)
        self.lane_tr(4, 5, 6)
        A("v_lshrrev_b32 v14, 1, v4")
        A("v_lshl_add_u32 v14, v14, 3, v5")
        A("v_lshlrev_b32 v15, 8, v14")
        A("s_and_b32 s60, s%d, 3" % sW)
        A("v_xor_b32 v13, s60, v5")
        A("v_lshl_add_u32 v15, v13, 6, v15")
        A("v_and_b32 v13, 1, v4")
        A("v_lshl_add_u32 v15, v13, 5, v15")
        A("v_lshl_add_u32 v%d, v6, 3, v15" % self.vTZ)
        A("v_add_u32 v%d, 0x10000, v%d" % (self.vTZ + 1, self.vTZ))
        A("s_mul_i32 s60, s%d, %d" % (sW, 4 * 3456))
        A("s_lshl_b32 s61, s%d, 6" % sU0)
        A("s_add_u32 s%d, s60, s61" % sX[2])
        A("s_add_u32 s%d, s%d, %d" % (sX[1], sX[2], 27 * 64))
        A("s_lshl_b32 s%d, s%d, 10" % (sX[3], sW))

    def z_dma(self, c):
        A = self.A
        base = sX[1] if c < 10 else sX[2]
        ids = []
        for half in range(2):
            A("s_add_u32 m0, s%d, %d" % (sX[3], (c % 8) * 16384 + half * 8192))
            A("s_add_u32 s60, s%d, %d" % (base, ((c % 10) * 64 + half * 32) * 3456))
            ids.append(A.vmem("buffer_load_dwordx4 v%d, %s, s60 offen lds" % (self.vZ, sr(WIN, 4))))
        self.zid[c] = ids[-1]

    def x_reads(self, s):
        A = self.A
        if s == 8:
            for k in range(4):
                A("v_add_u32 v%d, 0x10000, v%d" % (self.vXA + k, self.vXA + k))
        for k in range(4):
            A("ds_read_b128 %s, v%d offset:%d" % (vr(self.XF + 16 * s + 4 * k, 4), self.vXA + k, 8192 * (s % 8)))

    def z_reads(self, c):
        A = self.A
        sl = c % 8
        for k in range(4):
            for rd in range(2):
                A("ds_read_b64_tr_b16 %s, v%d offset:%d" % (vr(self.WB + 16 * (c % 2) + 4 * k + 2 * rd, 2),
                  self.vTZ + sl // 4, (sl % 4) * 16384 + k * 4096 + rd * 1024))

    def mfmas(self, acc, s, buf, swap=False):
        A = self.A
        for k in range(4):
            w = vr(self.WB + 16 * buf + 4 * k, 4); x = vr(self.XF + 16 * s + 4 * k, 4)
            c = "0" if (s == 0 and k == 0) else vr(acc, 16)
            a, b = (x, w) if swap else (w, x)
            A("v_mfma_f32_32x32x16_bf16 %s, %s, %s, %s" % (vr(acc, 16), a, b, c))

    def a1_variant(self, role):
        A = self.A
        A.vm = 0
        self.zid = {}
        wid = {}
        if role == "L":
            for ch in range(5):
                A.vm += 10; wid[ch] = A.vm
        if role == "Q":
            A("v_lshl_add_u32 v14, v5, 0, v14")
            A("v_mul_u32_u24 v14, 160, v14")
            A("s_and_b32 s60, s%d, 3" % sW)
            A("s_lshl_b32 s60, s60, 6")
            A("s_add_u32 s60, s60, %d" % RING)
            A("v_lshl_add_u32 v14, v13, 5, v14")
            A("v_lshl_add_u32 v14, v6, 3, v14")
            A("v_add_u32 v%d, s60, v14" % self.vTR)
        elif role in "KV":
            A("v_mul_u32_u24 v14, 40, v14")
            A("v_lshl_add_u32 v14, v13, 5, v14")
            A("v_lshl_add_u32 v14, v6, 3, v14")
            A("v_add_u32 v%d, 0x%x, v14" % (self.vTR, WKVL))
            A("s_waitcnt vmcnt(0)")
        for s in range(11):
            if role == "L" and s < 10:
                A.wait_vm(wid[s])
            if s == 10:
                A.wait_vm(self.zid[0])
            A("s_waitcnt lgkmcnt(0)")
            A("s_barrier")
            if role == "L" and 1 <= s <= 5:
                self.wq_dma(s + 4); wid[s + 4] = A.vm
            for c in self.ZSTEP.get(s, []):
                self.z_dma(c)
            if role in "KVI" and s == 6:
                A("v_mov_b32 v8, 0")
                A.vmem("buffer_load_dword v9, v8, %s, 0 offen sc1" % sr(DBG, 4))
                rid = A.vm
            if s < 10:
                self.x_reads(s)
                if role in "QKV":
                    for k in range(4):
                        for rd in range(2):
                            off = ((s % 5) * 10240 + k * 2560 + rd * 160) if role == "Q" else ((4 * s + k) * 640 + rd * 160)
                            A("ds_read_b64_tr_b16 %s, v%d offset:%d" % (vr(self.WB + 16 * (s % 2) + 4 * k + 2 * rd, 2), self.vTR, off))
            else:
                self.z_reads(0)
            if s >= 1 and role in "QKV":
                self.mfmas(self.ACC, s - 1, (s - 1) % 2, swap=(role == "V"))
        acc = self.ACC
        if role == "Q":
            A("v_mov_b32 v8, 0x%x" % f2u(QSCALE))
            A("s_lshr_b32 s60, s%d, 2" % sW)
            A("s_mul_i32 s60, s60, %d" % (32 * QP))
            A("s_and_b32 s61, s%d, 3" % sW)
            A("s_lshl_b32 s62, s61, 6")
            A("s_add_u32 s60, s60, s62")
            A("s_add_u32 s60, s60, %d" % QS)
            A("v_mul_u32_u24 v9, %d, v2" % QP)
            A("v_lshl_add_u32 v9, v3, 3, v9")
            A("v_add_u32 v9, s60, v9")
            for i in range(8):
                A("v_pk_mul_f32 %s, %s, v[8:9] op_sel_hi:[1,0]" % (vr(acc + 2 * i, 2), vr(acc + 2 * i, 2)))
            for i in range(8):
                A("v_cvt_pk_bf16_f32 v%d, v%d, v%d" % (acc + i, acc + 2 * i, acc + 2 * i + 1))
            A("ds_write_b64 v9, %s" % vr(acc, 2))
            A("ds_write_b64 v9, %s offset:16" % vr(acc + 2, 2))
            L = A.label("Lq")
            A("s_cmp_eq_u32 s61, 2")
            A("s_cbranch_scc1 " + L)
            A("ds_write_b64 v9, %s offset:32" % vr(acc + 4, 2))
            A("ds_write_b64 v9, %s offset:48" % vr(acc + 6, 2))
            A(L + ":")
        if role in "KVI":
            L = A.label("Lrdy")
            A.wait_vm(rid)
            A("v_readfirstlane_b32 s60, v9")
            A("s_cmp_lg_u32 s60, 0")
            A("s_cbranch_scc1 " + L)
            A("s_mov_b64 s[4:5], 1")
            self.poll(8, "0", 9, srd=DBG)
            A(L + ":")
        if role in "KV":
            A("s_lshl_b32 s60, s%d, 1" % sG)
            A("s_add_u32 s60, s60, s%d" % sKVT)
            A("s_lshl_b32 s61, s60, 12")
            A("s_add_u32 s61, s61, 0x%x" % KVB)
            A("s_lshl_b32 s%d, s60, 2" % sX[4])
        if role == "K":
            for i in range(6):
                A("v_cvt_pk_bf16_f32 v%d, v%d, v%d" % (acc + i, acc + 2 * i, acc + 2 * i + 1))
            A("v_cmp_eq_u32 vcc, 0, v3")
            A("v_cndmask_b32 v%d, 0, v%d, vcc" % (acc + 4, acc + 4))
            A("v_cndmask_b32 v%d, 0, v%d, vcc" % (acc + 5, acc + 5))
            A("buffer_store_dwordx4 %s, v7, %s, s61 offen sc1" % (vr(acc, 4), sr(WS, 4)))
            A("v_lshlrev_b32 v8, 3, v2")
            A("s_mov_b32 exec_hi, 0")
            A("buffer_store_dwordx2 %s, v8, %s, s61 offen offset:3072 sc1" % (vr(acc + 4, 2), sr(WS, 4)))
            A("s_mov_b64 exec, -1")
            A("v_mov_b32 v10, 0")
            for i in range(6):
                A("v_dot2_f32_bf16 v10, v%d, v%d, v10" % (acc + i, acc + i))
            A("v_mov_b32 v11, v10")
            A("v_permlane32_swap_b32 v10, v11")
            A("v_add_f32 v10, v10, v11")
        if role == "V":
            A("v_mov_b32 v10, 0")
            for i in range(8):
                A("v_max3_f32 v10, |v%d|, |v%d|, v10" % (acc + 2 * i, acc + 2 * i + 1))
            A("v_cmp_gt_u32 vcc, 20, v2")
            A("v_cndmask_b32 v10, 0, v10, vcc")
            for i in range(8):
                A("v_cvt_pk_bf16_f32 v%d, v%d, v%d" % (acc + i, acc + 2 * i, acc + 2 * i + 1))
            A("v_cmp_eq_u32 vcc, 20, v2")
            A("v_mov_b32 v11, 0x3f803f80")
            for i in range(8):
                A("v_cndmask_b32 v%d, v%d, v11, vcc" % (acc + i, acc + i))
            A("buffer_store_dwordx4 %s, v7, %s, s61 offen offset:1024 sc1" % (vr(acc, 4), sr(WS, 4)))
            A("buffer_store_dwordx4 %s, v7, %s, s61 offen offset:2048 sc1" % (vr(acc + 4, 4), sr(WS, 4)))
            A("s_add_u32 s%d, s%d, %d" % (sX[4], sX[4], F_V))
        if role in "KV":
            A("v_cmp_o_f32 vcc, v10, v10")
            A("v_mov_b32 v11, 0x7f800000")
            A("v_cndmask_b32 v10, v11, v10, vcc")
            self.wave_max(10, 11)
            A("v_readlane_b32 s%d, v10, 63" % sX[5])
            A("s_or_b32 s%d, s%d, 1" % (sX[5], sX[5]))
        A("s_branch L_zphase")

    def gelu(self, acc, T, stats):
        A = self.A
        A("v_mov_b32 v4, 0x%x" % f2u(GB))
        A("v_mov_b32 v5, 0x%x" % f2u(GA))
        P = range(8)
        for i in P: A("v_pk_mul_f32 %s, %s, %s" % (vr(T + 2 * i, 2), vr(acc + 2 * i, 2), vr(acc + 2 * i, 2)))
        for i in P: A("v_pk_fma_f32 %s, %s, v[4:5], v[4:5] op_sel:[0,0,1] op_sel_hi:[1,0,1]" % (vr(T + 2 * i, 2), vr(T + 2 * i, 2)))
        for i in P: A("v_pk_mul_f32 %s, %s, %s" % (vr(T + 2 * i, 2), vr(T + 2 * i, 2), vr(acc + 2 * i, 2)))
        for i in range(16): A("v_exp_f32 v%d, v%d" % (T + i, T + i))
        for i in P: A("v_pk_add_f32 %s, %s, 1.0 op_sel_hi:[1,0]" % (vr(T + 2 * i, 2), vr(T + 2 * i, 2)))
        for i in range(16): A("v_rcp_f32 v%d, v%d" % (T + i, T + i))
        for i in P: A("v_pk_mul_f32 %s, %s, %s" % (vr(acc + 2 * i, 2), vr(acc + 2 * i, 2), vr(T + 2 * i, 2)))
        if stats:
            A("v_pk_add_f32 v[8:9], %s, %s" % (vr(acc, 2), vr(acc + 2, 2)))
            A("v_pk_mul_f32 v[10:11], %s, %s" % (vr(acc, 2), vr(acc, 2)))
            for i in range(1, 8):
                if i >= 2: A("v_pk_add_f32 v[8:9], v[8:9], %s" % vr(acc + 2 * i, 2))
                A("v_pk_fma_f32 v[10:11], %s, %s, v[10:11]" % (vr(acc + 2 * i, 2), vr(acc + 2 * i, 2)))
            A("v_add_f32 v8, v8, v9")
            A("v_add_f32 v9, v10, v11")
            A("v_mov_b32 v10, v8")
            A("v_mov_b32 v11, v9")
            A("v_permlane32_swap_b32 v8, v10")
            A("v_permlane32_swap_b32 v9, v11")
            A("v_add_f32 v8, v8, v10")
            A("v_add_f32 v9, v9, v11")

    def zphase(self):
        A = self.A
        A("L_zphase:")
        self.stamp(3)
        A.vm = 0; self.zid = {}
        for c in range(8):
            A.vm += 2; self.zid[c] = A.vm
        for s in range(1, 21):
            if s < 20:
                A.wait_vm(self.zid[s])
            A("s_waitcnt lgkmcnt(0)")
            A("s_barrier")
            if s + 7 < 20:
                self.z_dma(s + 7)
            if s == 5:
                L = A.label("Lz")
                A("s_and_b32 s60, s%d, 3" % sW)
                A("s_cmp_eq_u32 s60, 3")
                A("s_cselect_b32 s60, s%d, 0" % sKVD)
                A("s_cmp_eq_u32 s%d, s%d" % (sW, sLDR))
                A("s_cselect_b32 s60, 0, s60")
                A("s_cmp_eq_u32 s60, 0")
                A("s_cbranch_scc1 " + L)
                A("s_waitcnt vmcnt(10)")
                A("v_mov_b32 v9, s%d" % sX[5])
                save = A.vm
                self.flag_store(8, 9, sX[4])
                A.vm = save
                A(L + ":")
            if s == 11:
                L, L2 = A.label("Lz"), A.label("Lz")
                A("s_cmp_eq_u32 s%d, 0" % sW)
                A("s_cbranch_scc0 " + L)
                A("v_lshlrev_b32 v12, 3, v1")
                A("v_add_u32 v13, 0x%x, v12" % ST)
                A("ds_read_b64 v[8:9], v13")
                A("ds_read_b64 v[10:11], v13 offset:512")
                A("ds_read_b64 v[14:15], v13 offset:1024")
                A("ds_read_b64 v[4:5], v13 offset:1536")
                A("s_lshl_b32 s60, s%d, 3" % sG)
                A("s_add_u32 s60, s60, s%d" % sJ)
                A("s_lshl_b32 s60, s60, 9")
                A("s_add_u32 s60, s60, 0x%x" % STATS)
                A("s_waitcnt lgkmcnt(0)")
                A("v_pk_add_f32 v[8:9], v[8:9], v[10:11]")
                A("v_pk_add_f32 v[8:9], v[8:9], v[14:15]")
                A("s_cmp_eq_u32 s%d, 3" % sNU)
                A("s_cbranch_scc1 " + L2)
                A("v_pk_add_f32 v[8:9], v[8:9], v[4:5]")
                A(L2 + ":")
                A("buffer_store_dwordx2 v[8:9], v12, %s, s60 offen sc1" % sr(WS, 4))
                A(L + ":")
            if s == 15:
                L = A.label("Lz")
                A("s_cmp_eq_u32 s%d, 0" % sW)
                A("s_cbranch_scc0 " + L)
                A("s_waitcnt vmcnt(2)")
                A("s_lshl_b32 s60, s%d, 7" % sG)
                A("s_lshl_b32 s61, s%d, 2" % sJ)
                A("s_add_u32 s60, s60, s61")
                A("s_add_u32 s60, s60, %d" % F_H2)
                A("v_mov_b32 v9, 1")
                save = A.vm
                self.flag_store(8, 9, 60)
                A.vm = save
                A(L + ":")
            if s < 20:
                self.z_reads(s)
            self.mfmas(self.ACC if s <= 10 else self.ACC1, (s - 1) % 10, (s - 1) % 2)
            if s == 10:
                self.stamp(4)
                self.gelu(self.ACC, self.ACC1, True)
                for i in range(8):
                    A("v_cvt_pk_bf16_f32 v%d, v%d, v%d" % (self.Z2P + i, self.ACC + 2 * i, self.ACC + 2 * i + 1))
                A("s_and_b32 s60, s%d, 3" % sW)
                A("s_lshl_b32 s60, s60, 9")
                A("s_lshr_b32 s61, s%d, 2" % sW)
                A("s_lshl_b32 s61, s61, 8")
                A("s_add_u32 s60, s60, s61")
                A("s_add_u32 s60, s60, %d" % ST)
                A("v_lshl_add_u32 v10, v2, 3, s60")
                A("s_mov_b32 exec_hi, 0")
                A("ds_write_b64 v10, v[8:9]")
                A("s_mov_b64 exec, -1")
        self.stamp(5)
        self.gelu(self.ACC1, self.ACC, False)
        for i in range(8):
            A("v_cvt_pk_bf16_f32 v%d, v%d, v%d" % (self.ACC + i, self.ACC1 + 2 * i, self.ACC1 + 2 * i + 1))
        A("s_cmp_ge_u32 s%d, 4" % sW)
        A("s_cbranch_scc1 L_roleB")
        A("s_lshl_b32 s60, s%d, 12" % sW)
        A("s_add_u32 s60, s60, %d" % PX)
        A("v_add_u32 v8, s60, v7")
        A("ds_write_b128 v8, %s" % vr(self.Z2P, 4))
        A("ds_write_b128 v8, %s offset:1024" % vr(self.Z2P + 4, 4))
        A("ds_write_b128 v8, %s offset:2048" % vr(self.ACC, 4))
        A("ds_write_b128 v8, %s offset:3072" % vr(self.ACC + 4, 4))
        A("s_waitcnt lgkmcnt(0)")
        A("s_barrier")

    O, Q, KV, S, P = 128, 80, 52, 20, 12

    def kv_regs(self, b):
        base = self.KV + 14 * b
        return base, base + 12, base + 4

    def load_k(self, b, sreg):
        k1, k2, _ = self.kv_regs(b)
        self.A("buffer_load_dwordx4 %s, v7, %s, s%d offen sc1" % (vr(k1, 4), sr(WS, 4), sreg))
        self.A("buffer_load_dwordx2 %s, v5, %s, s%d offen offset:3072 sc1" % (vr(k2, 2), sr(WS, 4), sreg))

    def load_v(self, b, sreg):
        _, _, v = self.kv_regs(b)
        self.A("buffer_load_dwordx4 %s, v7, %s, s%d offen offset:1024 sc1" % (vr(v, 4), sr(WS, 4), sreg))
        self.A("buffer_load_dwordx4 %s, v7, %s, s%d offen offset:2048 sc1" % (vr(v + 4, 4), sr(WS, 4), sreg))

    def qk(self, which, sbuf, kb, qt):
        k1, k2, _ = self.kv_regs(kb)
        s = vr(self.S + 16 * sbuf, 16); q = self.Q + 6 * qt
        if which == 0:
            return "v_mfma_f32_32x32x16_bf16 %s, %s, %s, 0" % (s, vr(k1, 4), vr(q, 4))
        return "v_mfma_f32_32x32x8_bf16 %s, %s, %s, %s" % (s, vr(k2, 2), vr(q + 4, 2), s)

    def pv(self, which, vb, qt):
        _, _, v = self.kv_regs(vb)
        o = vr(self.O + 16 * qt, 16)
        return "v_mfma_f32_32x32x16_bf16 %s, %s, %s, %s" % (o, vr(v + 4 * which, 4), vr(self.P + 4 * which, 4), o)

    def roleA(self):
        A = self.A
        self.stamp(6)
        A("v_mul_u32_u24 v4, %d, v2" % QP)
        A("v_add_u32 v4, 0x%x, v4" % QS)
        A("v_lshl_add_u32 v6, v3, 3, v4")
        for lh in range(4):
            A("s_add_u32 s60, s%d, %d" % (sW, lh))
            A("s_and_b32 s60, s60, 3")
            A("s_mul_i32 s60, s60, 40")
            A("v_add_u32 v8, s60, v6")
            A("v_add_u32 v9, s60, v4")
            for tt in range(2):
                q = self.Q + 6 * (2 * lh + tt)
                A("ds_read_b64 %s, v8 offset:%d" % (vr(q, 2), tt * 32 * QP))
                A("ds_read_b64 %s, v8 offset:%d" % (vr(q + 2, 2), tt * 32 * QP + 16))
                A("ds_read_b64 %s, v9 offset:%d" % (vr(q + 4, 2), tt * 32 * QP + 32))
        A("v_lshlrev_b32 v4, 2, v1")
        A("s_mov_b64 s[4:5], -1")
        self.poll(4, "0", 10)
        A("s_mov_b32 s60, %d" % F_V)
        self.poll(4, "s60", 11)
        self.stamp(7)
        A("v_lshlrev_b32 v5, 3, v2")
        sK, sV = sX[0], sX[1]
        A("s_lshl_b32 s%d, s%d, 16" % (sK, sW))
        A("s_add_u32 s%d, s%d, 0x%x" % (sK, sK, KVB))
        A("s_add_u32 s60, s%d, 4096" % sK)
        self.load_k(0, sK); self.load_v(0, sK); self.load_k(1, 60)
        A("s_add_u32 s%d, s%d, 4096" % (sV, sK))
        A("s_add_u32 s%d, s%d, 8192" % (sK, sK))
        self.wave_max(10, 8)
        self.wave_max(11, 8)
        A("v_readlane_b32 s62, v10, 63")
        A("v_readlane_b32 s63, v11, 63")
        A("s_waitcnt lgkmcnt(0)")
        A("v_mov_b32 v8, 0x%x" % (CNTS + 4))
        A("v_mov_b32 v9, 1")
        A("s_mov_b64 exec, 1")
        A("ds_add_u32 v8, v9")
        A("s_mov_b64 exec, -1")
        A("v_cmp_eq_u32 vcc, 0, v3")
        for qt in range(8):
            q = self.Q + 6 * qt
            A("v_cndmask_b32 v%d, 0, v%d, vcc" % (q + 4, q + 4))
            A("v_cndmask_b32 v%d, 0, v%d, vcc" % (q + 5, q + 5))
        T = self.S
        for qt in range(8):
            A("v_mov_b32 v%d, 0" % (T + qt))
        for i in range(6):
            for qt in range(8):
                q = self.Q + 6 * qt
                A("v_dot2_f32_bf16 v%d, v%d, v%d, v%d" % (T + qt, q + i, q + i, T + qt))
        for qt in range(8):
            A("v_mov_b32 v%d, v%d" % (T + 8 + qt, T + qt))
        for qt in range(8):
            A("v_permlane32_swap_b32 v%d, v%d" % (T + qt, T + 8 + qt))
        for qt in range(8):
            A("v_add_f32 v%d, v%d, v%d" % (T + qt, T + qt, T + 8 + qt))
        A("s_mov_b64 s[6:7], 0")
        A("v_mov_b32 v8, 0x%x" % f2u(3600.0))
        for qt in range(8):
            A("v_mul_f32 v%d, s62, v%d" % (T + qt, T + qt))
            A("v_cmp_nle_f32 vcc, v%d, v8" % (T + qt))
            A("s_or_b64 s[6:7], s[6:7], vcc")
        A("s_cmp_gt_u32 s63, 0x%x" % f2u(2.0 ** 40))
        A("s_cselect_b32 s60, 1, 0")
        A("s_or_b32 s6, s6, s60")
        A("s_mul_i32 s60, s%d, 20" % sJ)
        A("s_mul_i32 s61, s%d, 5" % sW)
        A("s_add_u32 s60, s60, s61")
        A("v_lshrrev_b32 v11, 4, v2")
        A("v_lshlrev_b32 v11, 10, v11")
        A("v_and_b32 v4, 15, v2")
        A("v_lshl_add_u32 v11, v4, 4, v11")
        for n, add in enumerate((0, 2, 4)):
            d = 8 + n
            if n < 2:
                A("v_add_u32 v4, s60, v3")
                if add: A("v_add_u32 v4, %d, v4" % add)
            else:
                A("s_add_u32 s61, s60, 4")
                A("v_mov_b32 v4, s61")
            A("v_lshrrev_b32 v6, 3, v4")
            A("v_lshl_add_u32 v%d, v6, 12, v11" % d)
            A("v_bfe_u32 v6, v4, 2, 1")
            A("v_lshl_add_u32 v%d, v6, 9, v%d" % (d, d))
            A("v_and_b32 v6, 1, v4")
            A("v_lshl_add_u32 v%d, v6, 8, v%d" % (d, d))
            A("v_bfe_u32 v6, v4, 1, 1")
            A("v_lshl_add_u32 v%d, v6, 3, v%d" % (d, d))
        for i in range(128):
            A("v_mov_b32 v%d, 0" % (self.O + i))
        for i in range(8):
            A("v_mov_b32 v%d, 0" % (self.P + i))
        for i in range(8):
            A("v_mov_b32 v%d, 0" % (self.kv_regs(1)[2] + i))
        if self.force_fb:
            A("s_branch L_fallback")
        A("s_cmp_lg_u64 s[6:7], 0")
        A("s_cbranch_scc1 L_fallback")
        A("s_waitcnt vmcnt(0)")
        A(self.qk(0, 0, 0, 0)); A(self.qk(1, 0, 0, 0))
        A("s_mov_b32 s%d, 0" % sX[2])
        A("s_nop 7")
        self.stamp(8)
        A(".p2align 3")
        A("L_att:")
        for half in range(2):
            for qt in range(8):
                x = self.S + 16 * (qt % 2)
                nb = half if qt < 7 else 1 - half
                e = ["v_exp_f32 v%d, v%d" % (x + i, x + i) for i in range(16)]
                c = ["v_cvt_pk_bf16_f32 v%d, v%d, v%d" % (self.P + i, x + 2 * i, x + 2 * i + 1) for i in range(8)]
                if qt == 7: A("s_waitcnt vmcnt(2)")
                A(self.qk(0, (qt + 1) % 2, nb, (qt + 1) % 8))
                if qt == 7:
                    self.load_k(half, sK)
                    A("s_add_u32 s%d, s%d, 4096" % (sK, sK))
                for i in e[0:3]: A(i)
                A(self.qk(1, (qt + 1) % 2, nb, (qt + 1) % 8))
                for i in e[3:8]: A(i)
                for i in c[0:4]: A(i)
                A(self.pv(1, half if qt > 0 else 1 - half, (qt - 1) % 8))
                if qt == 0:
                    self.load_v(1 - half, sV)
                    A("s_add_u32 s%d, s%d, 4096" % (sV, sV))
                for i in e[8:11]: A(i)
                if qt == 0: A("s_waitcnt vmcnt(4)")
                A(self.pv(0, half, qt))
                for i in e[11:16]: A(i)
                for i in c[4:8]: A(i)
        A("s_add_u32 s%d, s%d, 1" % (sX[2], sX[2]))
        A("s_cmp_lt_u32 s%d, 8" % sX[2])
        A("s_cbranch_scc1 L_att")
        A(self.pv(1, 1, 7))
        self.stamp(9)
        A("s_barrier")
        A("L_attdone:")
        A("s_mul_i32 s60, s%d, 18432" % sW)
        A("s_add_u32 s60, s60, %d" % EXCH)
        A("v_add_u32 v4, s60, v7")
        for lh in range(1, 4):
            for tt in range(2):
                for k in range(3):
                    A("ds_write_b128 v4, %s offset:%d" % (vr(self.O + 16 * (2 * lh + tt) + 4 * k, 4), ((lh - 1) * 6 + tt * 3 + k) * 1024))
        A("s_waitcnt lgkmcnt(0)")
        A("s_barrier")
        A("s_waitcnt vmcnt(0)")
        R = 20
        for d in range(1, 4):
            A("s_add_u32 s60, s%d, %d" % (sW, 4 - d))
            A("s_and_b32 s60, s60, 3")
            A("s_mul_i32 s60, s60, 18432")
            A("s_add_u32 s60, s60, %d" % (EXCH + (d - 1) * 6144))
            A("v_add_u32 v4, s60, v7")
            for k in range(6):
                A("ds_read_b128 %s, v4 offset:%d" % (vr(R + 24 * (d - 1) + 4 * k, 4), k * 1024))
        A("s_waitcnt lgkmcnt(0)")
        A("s_barrier")
        for tt in range(2):
            for i in range(6):
                o = vr(self.O + 16 * tt + 2 * i, 2)
                A("v_pk_add_f32 %s, %s, %s" % (vr(R + 12 * tt + 2 * i, 2), vr(R + 12 * tt + 2 * i, 2), vr(R + 24 + 12 * tt + 2 * i, 2)))
                A("v_pk_add_f32 %s, %s, %s" % (o, o, vr(R + 48 + 12 * tt + 2 * i, 2)))
                A("v_pk_add_f32 %s, %s, %s" % (o, o, vr(R + 12 * tt + 2 * i, 2)))
        A("s_mul_i32 s60, s%d, %d" % (sG, 20 * 4096))
        A("s_add_u32 s60, s60, 0x%x" % OB)
        for tt in range(2):
            o = self.O + 16 * tt
            A("v_mov_b32 v12, v%d" % (o + 8))
            A("v_mov_b32 v14, v%d" % (o + 8))
            A("v_permlane32_swap_b32 v12, v14")
            A("v_rcp_f32 v14, v14")
            for i in range(6):
                A("v_pk_mul_f32 %s, %s, v[14:15] op_sel_hi:[1,0]" % (vr(o + 2 * i, 2), vr(o + 2 * i, 2)))
            for i in range(6):
                A("v_cvt_pk_bf16_f32 v%d, v%d, v%d" % (o + i, o + 2 * i, o + 2 * i + 1))
            A("buffer_store_dwordx2 %s, v8, %s, s60 offen offset:%d sc1" % (vr(o, 2), sr(WS, 4), 2048 * tt))
            A("buffer_store_dwordx2 %s, v9, %s, s60 offen offset:%d sc1" % (vr(o + 2, 2), sr(WS, 4), 2048 * tt))
            A("s_mov_b32 exec_hi, 0")
            A("buffer_store_dwordx2 %s, v10, %s, s60 offen offset:%d sc1" % (vr(o + 4, 2), sr(WS, 4), 2048 * tt))
            A("s_mov_b64 exec, -1")
        A("s_lshl_b32 s60, s%d, 7" % sG)
        A("s_lshl_b32 s61, s%d, 4" % sJ)
        A("s_add_u32 s60, s60, s61")
        A("s_lshl_b32 s61, s%d, 2" % sW)
        A("s_add_u32 s60, s60, s61")
        A("s_add_u32 s60, s60, %d" % F_H5)
        A("v_mov_b32 v13, 1")
        A("s_waitcnt vmcnt(0)")
        self.flag_store(12, 13, 60)
        self.stamp(10)
        A("s_branch L_tail")

    def fallback(self):
        A = self.A
        sK, sV = sX[0], sX[1]
        M = self.S + 16
        T = M + 8
        x = self.S
        A("L_fallback:")
        for qt in range(8):
            A("v_mov_b32 v%d, 0x%x" % (M + qt, f2u(-3.0e38)))
        A("s_sub_u32 s%d, s%d, 8192" % (sK, sK))
        A("s_mov_b32 s%d, 0" % sX[2])
        A("L_fb:")
        self.load_k(0, sK); self.load_v(0, sK)
        A("s_add_u32 s%d, s%d, 4096" % (sK, sK))
        A("s_waitcnt vmcnt(0)")
        for qt in range(8):
            A(self.qk(0, 0, 0, qt)); A(self.qk(1, 0, 0, qt))
            A("v_max3_f32 v%d, v%d, v%d, v%d" % (T, x, x + 1, M + qt))
            for i in range(1, 8):
                A("v_max3_f32 v%d, v%d, v%d, v%d" % (T, x + 2 * i, x + 2 * i + 1, T))
            A("v_mov_b32 v%d, v%d" % (T + 1, T))
            A("v_permlane32_swap_b32 v%d, v%d" % (T, T + 1))
            A("v_max_f32 v%d, v%d, v%d" % (T, T, T + 1))
            A("v_sub_f32 v%d, v%d, v%d" % (T + 2, M + qt, T))
            A("v_exp_f32 v%d, v%d" % (T + 2, T + 2))
            A("v_mov_b32 v%d, v%d" % (M + qt, T))
            for i in range(16):
                A("v_sub_f32 v%d, v%d, v%d" % (x + i, x + i, T))
            for i in range(16):
                A("v_exp_f32 v%d, v%d" % (x + i, x + i))
            for i in range(12):
                A("v_mul_f32 v%d, v%d, v%d" % (self.O + 16 * qt + i, self.O + 16 * qt + i, T + 2))
            for i in range(8):
                A("v_cvt_pk_bf16_f32 v%d, v%d, v%d" % (self.P + i, x + 2 * i, x + 2 * i + 1))
            A(self.pv(0, 0, qt)); A(self.pv(1, 0, qt))
        A("s_add_u32 s%d, s%d, 1" % (sX[2], sX[2]))
        A("s_cmp_lt_u32 s%d, 16" % sX[2])
        A("s_cbranch_scc1 L_fb")
        A("v_lshlrev_b32 v4, 2, v2")
        for lh in range(4):
            A("s_add_u32 s60, s%d, %d" % (sW, lh))
            A("s_and_b32 s60, s60, 3")
            A("s_lshl_b32 s60, s60, 8")
            A("s_add_u32 s%d, s60, %d" % (sX[4 + lh], MAREA))
            A("s_lshl_b32 s61, s%d, 10" % sW)
            A("s_add_u32 s60, s61, s%d" % sX[4 + lh])
            A("v_add_u32 v6, s60, v4")
            A("ds_write_b32 v6, v%d" % (M + 2 * lh))
            A("ds_write_b32 v6, v%d offset:128" % (M + 2 * lh + 1))
        A("s_waitcnt lgkmcnt(0)")
        A("s_barrier")
        for lh in range(4):
            A("v_add_u32 v6, s%d, v4" % sX[4 + lh])
            for tt in range(2):
                for w in range(4):
                    A("ds_read_b32 v%d, v6 offset:%d" % (x + w, 1024 * w + 128 * tt))
                A("s_waitcnt lgkmcnt(0)")
                qt = 2 * lh + tt
                A("v_max3_f32 v%d, v%d, v%d, v%d" % (x, x, x + 1, x + 2))
                A("v_max_f32 v%d, v%d, v%d" % (x, x, x + 3))
                A("v_sub_f32 v%d, v%d, v%d" % (x, M + qt, x))
                A("v_exp_f32 v%d, v%d" % (x, x))
                for i in range(12):
                    A("v_mul_f32 v%d, v%d, v%d" % (self.O + 16 * qt + i, self.O + 16 * qt + i, x))
        A("s_branch L_attdone")

    def roleB(self):
        A = self.A
        A("L_roleB:")
        Z1P, ZN = 32, 48
        sB = sX[11]
        for i in range(8):
            A("v_mov_b32 v%d, v%d" % (Z1P + 8 + i, self.ACC + i))
            A("v_mov_b32 v%d, v%d" % (ZN + 8 + i, self.Z2P + i))
        A("s_sub_u32 s%d, s%d, 4" % (sB, sW))
        A("s_barrier")
        self.stamp(6)
        A("s_lshl_b32 s60, s%d, 12" % sB)
        A("s_add_u32 s60, s60, %d" % PX)
        A("v_add_u32 v8, s60, v7")
        A("ds_read_b128 %s, v8" % vr(ZN, 4))
        A("ds_read_b128 %s, v8 offset:1024" % vr(ZN + 4, 4))
        A("ds_read_b128 %s, v8 offset:2048" % vr(Z1P, 4))
        A("ds_read_b128 %s, v8 offset:3072" % vr(Z1P + 4, 4))
        A("v_lshlrev_b32 v4, 2, v2")
        A("s_lshl_b32 s60, s%d, 7" % sG)
        A("s_add_u32 s60, s60, %d" % F_H2)
        A("s_mov_b64 s[4:5], 0xff")
        self.poll(4, "s60", 8)
        A("v_lshlrev_b32 v5, 3, v1")
        A("s_lshl_b32 s60, s%d, 12" % sG)
        A("s_add_u32 s60, s60, 0x%x" % STATS)
        for m in range(8):
            A("buffer_load_dwordx2 %s, v5, %s, s60 offen offset:%d sc1" % (vr(64 + 2 * m, 2), sr(WS, 4), 512 * m))
        A("v_lshlrev_b32 v6, 1, v2")
        A("s_lshl_b32 s60, s%d, 7" % sG)
        A("buffer_load_ushort v30, v6, %s, s60 offen" % sr(BSP, 4))
        A("buffer_load_ushort v31, v6, %s, s60 offen offset:64" % sr(BSP, 4))
        A("s_waitcnt vmcnt(0)")
        for m in (0, 2, 4, 6):
            A("v_pk_add_f32 %s, %s, %s" % (vr(64 + 2 * m, 2), vr(64 + 2 * m, 2), vr(66 + 2 * m, 2)))
        A("v_pk_add_f32 v[64:65], v[64:65], v[68:69]")
        A("v_pk_add_f32 v[72:73], v[72:73], v[76:77]")
        A("v_pk_add_f32 v[64:65], v[64:65], v[72:73]")
        A("v_mul_f32 v64, 0x%x, v64" % f2u(1.0 / 864))
        A("v_mul_f32 v65, 0x%x, v65" % f2u(1.0 / 864))
        A("v_fma_f32 v65, -v64, v64, v65")
        A("v_max_f32 v65, 0, v65")
        A("v_add_f32 v65, 0x%x, v65" % f2u(1e-5))
        A("v_rsq_f32 v66, v65")
        A("v_lshlrev_b32 v30, 16, v30")
        A("v_mul_f32_e64 v67, -v64, v66")
        A("v_lshlrev_b32 v31, 16, v31")
        A("v_mov_b32 v68, v66")
        A("v_mov_b32 v69, v67")
        A("v_permlane32_swap_b32 v66, v68")
        A("v_permlane32_swap_b32 v67, v69")
        A("s_mov_b32 s61, 0xffff0000")
        A("s_lshl_b32 s60, s%d, 12" % sB)
        A("s_add_u32 s60, s60, %d" % TRS)
        A("v_lshlrev_b32 v8, 6, v2")
        A("v_lshl_add_u32 v8, v3, 3, v8")
        A("v_add_u32 v8, s60, v8")
        A("s_waitcnt lgkmcnt(0)")
        for tt in range(2):
            c = vr(66 + 2 * tt, 2)
            for i in range(8):
                A("v_lshlrev_b32 v%d, 16, v%d" % (72 + 2 * i, ZN + 8 * tt + i))
                A("v_and_b32 v%d, s61, v%d" % (73 + 2 * i, ZN + 8 * tt + i))
            for i in range(8):
                A("v_pk_fma_f32 %s, %s, %s, %s op_sel:[0,0,1] op_sel_hi:[1,0,1]" % (vr(72 + 2 * i, 2), vr(72 + 2 * i, 2), c, c))
            for i in range(8):
                A("v_cvt_pk_bf16_f32 v%d, v%d, v%d" % (ZN + 8 * tt + i, 72 + 2 * i, 73 + 2 * i))
            for i in range(4):
                A("ds_write_b64 v8, %s offset:%d" % (vr(ZN + 8 * tt + 2 * i, 2), 2048 * tt + 16 * i))
        self.lane_tr(9, 10, 11)
        A("v_lshrrev_b32 v12, 1, v9")
        A("v_lshl_add_u32 v12, v12, 3, v10")
        A("v_lshlrev_b32 v12, 6, v12")
        A("v_and_b32 v13, 1, v9")
        A("v_lshl_add_u32 v12, v13, 5, v12")
        A("v_lshl_add_u32 v12, v11, 3, v12")
        A("v_add_u32 v12, s60, v12")
        A("s_waitcnt lgkmcnt(0)")
        for ks in range(4):
            for rd in range(2):
                A("ds_read_b64_tr_b16 %s, v12 offset:%d" % (vr(64 + 4 * ks + 2 * rd, 2), 1024 * ks + 256 * rd))
        A("v_lshrrev_b32 v15, 1, v9")
        A("v_lshlrev_b32 v15, 4, v15")
        A("v_lshl_add_u32 v15, v13, 2, v15")
        A("v_add_u32 v15, v15, v10")
        A("v_mul_u32_u24 v15, 160, v15")
        A("v_lshl_add_u32 v15, v11, 3, v15")
        A("v_lshrrev_b32 v8, 3, v1")
        A("v_lshlrev_b32 v8, 12, v8")
        A("v_lshrrev_b32 v9, 4, v1")
        A("v_and_b32 v10, 7, v1")
        A("v_xor_b32 v9, v9, v10")
        A("v_lshl_add_u32 v16, v9, 4, v8")
        A("v_xor_b32 v17, 64, v16")
        A("s_mul_i32 s%d, s%d, 24576" % (sX[0], sB))
        A("v_lshrrev_b32 v8, 3, v2")
        A("v_lshlrev_b32 v8, 10, v8")
        A("v_and_b32 v9, 7, v2")
        A("v_lshl_add_u32 v8, v9, 7, v8")
        A("v_bfe_u32 v9, v2, 1, 3")
        A("v_xor_b32 v9, v9, v3")
        A("v_lshl_add_u32 v8, v9, 4, v8")
        A("v_add_u32 v18, s%d, v8" % sX[0])
        for k in range(1, 4):
            A("v_xor_b32 v%d, %d, v18" % (18 + k, 32 * k))
        A("s_lshl_b32 s%d, s%d, 18" % (sX[1], sG))
        A("s_lshl_b32 s60, s%d, 10" % sB)
        A("s_add_u32 s%d, s%d, s60" % (sX[1], sX[1]))
        A("s_sub_u32 s63, s%d, 1" % sNU)
        for lu in range(4):
            A("s_add_u32 s60, s%d, %d" % (sB, lu))
            A("s_and_b32 s60, s60, 3")
            A("s_min_u32 s60, s60, s63")
            A("s_add_u32 s60, s60, s%d" % sU0)
            if lu == 0: A("s_mov_b32 s%d, s60" % sX[6])
            A("s_lshl_b32 s60, s60, 17")
            A("s_lshl_b32 s61, s%d, 15" % sB)
            A("s_add_u32 s60, s60, s61")
            A("s_add_u32 s%d, s60, 0x%x" % (sX[2 + lu], Z2N))
        A("s_lshl_b32 s60, s%d, 17" % sX[6])
        A("s_lshl_b32 s61, s%d, 12" % sG)
        A("s_add_u32 s60, s60, s61")
        A("s_add_u32 s60, s60, 0x%x" % Z2N)
        A("s_waitcnt lgkmcnt(0)")
        Lsk = A.label("Lb")
        A("s_cmp_ge_u32 s%d, s%d" % (sB, sNU))
        A("s_cbranch_scc1 " + Lsk)
        for ks in range(4):
            A("buffer_store_dwordx4 %s, v7, %s, s60 offen offset:%d sc1" % (vr(64 + 4 * ks, 4), sr(WS, 4), 1024 * ks))
        A(Lsk + ":")
        A.vm = 0
        did = {}

        def wsp_dma(st):
            for rg in range(8):
                A("s_add_u32 m0, s%d, %d" % (sX[0], (st % 3) * 8192 + rg * 1024))
                A("s_add_u32 s60, s%d, %d" % (sX[1], rg * 32768 + st * 128))
                did[st] = A.vmem("buffer_load_dwordx4 v%d, %s, s60 offen lds" % (16 + rg % 2, sr(WSP, 4)))
        for st in range(3): wsp_dma(st)
        Lsk = A.label("Lb")
        A("s_cmp_ge_u32 s%d, s%d" % (sB, sNU))
        A("s_cbranch_scc1 " + Lsk)
        A("s_waitcnt vmcnt(24)")
        A("s_lshl_b32 s60, s%d, 2" % sJ)
        A("s_lshr_b32 s61, s%d, 3" % sG)
        A("s_add_u32 s60, s60, s61")
        A("s_lshl_b32 s60, s60, 7")
        A("s_and_b32 s61, s%d, 7" % sG)
        A("s_lshl_b32 s61, s61, 4")
        A("s_add_u32 s60, s60, s61")
        A("s_lshl_b32 s61, s%d, 2" % sB)
        A("s_add_u32 s60, s60, s61")
        A("s_add_u32 s60, s60, %d" % F_H3)
        A("v_mov_b32 v9, 1")
        self.flag_store(8, 9, 60)
        A(Lsk + ":")
        self.stamp(7)
        A("s_lshl_b32 s60, s%d, 2" % sJ)
        A("s_add_u32 s60, s60, s%d" % sB)
        A("s_lshl_b32 s60, s60, 7")
        A("s_add_u32 s60, s60, %d" % F_H3)
        A("s_cmp_eq_u32 s%d, 4" % sNU)
        A("s_cselect_b32 s4, -1, 0x77777777")
        A("s_mov_b32 s5, 0")
        self.poll(4, "s60", 8, sleep=4)
        self.stamp(8)
        A.vm = 0
        did = {0: 0, 1: 0, 2: 0}
        zid = {}
        ZB, WF, AC = 64, 48, 128

        def zload(ks):
            for lu in range(4):
                zid[ks] = A.vmem("buffer_load_dwordx4 %s, v7, %s, s%d offen offset:%d sc1" % (
                    vr(ZB + 16 * (ks % 4) + 4 * lu, 4), sr(WS, 4), sX[2 + lu], 1024 * (ks % 4)))
            if ks % 4 == 3:
                for lu in range(4):
                    A("s_add_u32 s%d, s%d, 4096" % (sX[2 + lu], sX[2 + lu]))

        def wread(ks):
            st = ks // 4
            for tt in range(2):
                A("ds_read_b128 %s, v%d offset:%d" % (vr(WF + 8 * (ks % 2) + 4 * tt, 4), 18 + ks % 4, (st % 3) * 8192 + tt * 4096))
        for ks in range(4): zload(ks)
        wread(0)
        for ks in range(32):
            st = ks // 4
            if ks + 1 < 32:
                if (ks + 1) % 4 == 0 and did[st + 1] > 0:
                    A.wait_vm(did[st + 1])
                wread(ks + 1)
                A("s_waitcnt lgkmcnt(2)")
            else:
                A("s_waitcnt lgkmcnt(0)")
            if ks % 4 == 3 and st + 3 < 8:
                wsp_dma(st + 3)
            A.wait_vm(zid[ks])
            for lu in range(4):
                for tt in range(2):
                    acc = vr(AC + 16 * (2 * lu + tt), 16)
                    A("v_mfma_f32_32x32x16_bf16 %s, %s, %s, %s" % (acc, vr(ZB + 16 * (ks % 4) + 4 * lu, 4),
                      vr(WF + 8 * (ks % 2) + 4 * tt, 4), "0" if ks == 0 else acc))
            if ks + 4 < 32: zload(ks + 4)
        self.stamp(9)
        A("v_add_u32 v8, s%d, v7" % sX[0])
        for lu in range(1, 4):
            for k in range(8):
                A("ds_write_b128 v8, %s offset:%d" % (vr(AC + 32 * lu + 4 * k, 4), (lu - 1) * 8192 + k * 1024))
        self.bsync(0, 8, 9)
        for d in range(1, 4):
            A("s_add_u32 s60, s%d, %d" % (sB, 4 - d))
            A("s_and_b32 s60, s60, 3")
            A("s_mul_i32 s60, s60, 24576")
            A("s_add_u32 s60, s60, %d" % ((d - 1) * 8192))
            A("v_add_u32 v8, s60, v7")
            for k in range(8):
                A("ds_read_b128 %s, v8 offset:%d" % (vr(AC + 32 * d + 4 * k, 4), k * 1024))
        for n in range(5):
            self.addr160(48 + n, n, False, 8, 9)
        A("s_mov_b32 s61, 0xffff0000")
        A("s_waitcnt lgkmcnt(0)")
        for i in range(16):
            A("v_pk_add_f32 %s, %s, %s" % (vr(AC + 2 * i, 2), vr(AC + 2 * i, 2), vr(AC + 32 + 2 * i, 2)))
            A("v_pk_add_f32 %s, %s, %s" % (vr(AC + 64 + 2 * i, 2), vr(AC + 64 + 2 * i, 2), vr(AC + 96 + 2 * i, 2)))
        for i in range(16):
            A("v_pk_add_f32 %s, %s, %s" % (vr(AC + 2 * i, 2), vr(AC + 2 * i, 2), vr(AC + 64 + 2 * i, 2)))
        for i in range(16):
            A("v_pk_add_f32 %s, %s, v[30:31] op_sel:[0,%d] op_sel_hi:[1,%d]" % (vr(AC + 2 * i, 2), vr(AC + 2 * i, 2), i // 8, i // 8))
            A("v_lshlrev_b32 v%d, 16, v%d" % (64 + 2 * i, Z1P + i))
            A("v_and_b32 v%d, s61, v%d" % (65 + 2 * i, Z1P + i))
        for i in range(16):
            A("v_pk_mul_f32 %s, %s, %s" % (vr(AC + 2 * i, 2), vr(AC + 2 * i, 2), vr(64 + 2 * i, 2)))
        for i in range(16):
            A("v_cvt_pk_bf16_f32 v%d, v%d, v%d" % (96 + i, AC + 2 * i, AC + 2 * i + 1))
        A("v_lshrrev_b32 v8, 4, v2")
        A("v_lshlrev_b32 v8, 10, v8")
        A("v_and_b32 v9, 15, v2")
        A("v_lshl_add_u32 v8, v9, 4, v8")
        A("v_lshl_add_u32 v8, v3, 8, v8")
        A("s_mul_i32 s%d, s%d, 27" % (sX[1], sG))
        A("s_add_u32 s60, s%d, s%d" % (sX[1], sX[6]))
        A("s_lshl_b32 s60, s60, 12")
        A("s_add_u32 s60, s60, 0x%x" % UB)
        Lsk = A.label("Lb")
        A("s_cmp_ge_u32 s%d, s%d" % (sB, sNU))
        A("s_cbranch_scc1 " + Lsk)
        for tt in range(2):
            for ch in range(2):
                A("buffer_store_dwordx4 %s, v8, %s, s60 offen offset:%d sc1" % (vr(96 + 8 * tt + 4 * ch, 4), sr(WS, 4), 2048 * tt + 512 * ch))
        A(Lsk + ":")
        self.bsync(1, 10, 11, n=8)
        A("s_mul_i32 s%d, s%d, 160" % (sX[7], sJ))
        A("s_mul_i32 s60, s%d, 40960" % sB)
        A("s_add_u32 s%d, s%d, s60" % (sX[8], sX[7]))
        A("s_mul_i32 s%d, s%d, 5120" % (sX[9], sB))

        def wdma(srd, i):
            for n in range(5):
                A("s_add_u32 m0, s%d, %d" % (sX[9], i * 20480 + n * 1024))
                A("s_add_u32 s60, s%d, %d" % (sX[8], i * 163840))
                A("buffer_load_dwordx4 v%d, %s, s60 offen lds" % (48 + n, sr(srd, 4)))
        for i in range(6): wdma(WOUT, i)
        Lsk = A.label("Lb")
        A("s_cmp_eq_u32 s%d, 3" % sB)
        A("s_cbranch_scc1 " + Lsk)
        wdma(WOUT, 6)
        A(Lsk + ":")
        Lsk = A.label("Lb")
        A("s_cmp_ge_u32 s%d, s%d" % (sB, sNU))
        A("s_cbranch_scc1 " + Lsk)
        A("s_waitcnt vmcnt(30)")
        A("s_lshl_b32 s60, s%d, 7" % sG)
        A("s_lshl_b32 s61, s%d, 2" % sX[6])
        A("s_add_u32 s60, s60, s61")
        A("s_add_u32 s60, s60, %d" % F_H4)
        A("v_mov_b32 v9, 1")
        self.flag_store(8, 9, 60)
        A(Lsk + ":")
        self.stamp(10)
        A("s_lshl_b32 s60, s%d, 7" % sG)
        A("s_add_u32 s60, s60, %d" % F_H4)
        A("s_mov_b64 s[4:5], 0x07ffffff")
        self.poll(4, "s60", 8, sleep=2)
        UF, GG, WD = 128, 16, 56
        A.vm = 0
        uid = {}
        A("s_lshl_b32 s60, s%d, 12" % sX[1])
        A("s_lshl_b32 s61, s%d, 10" % sB)
        A("s_add_u32 s60, s60, s61")
        A("s_add_u32 s60, s60, 0x%x" % UB)
        for u in range(27):
            uid[u] = A.vmem("buffer_load_dwordx4 %s, v7, %s, s60 offen sc1" % (vr(UF + 4 * u, 4), sr(WS, 4)))
            A("s_add_u32 s60, s60, 4096")
        A("v_and_b32 v46, 15, v1")
        A("v_mul_u32_u24 v46, 1280, v46")
        A("v_lshrrev_b32 v8, 4, v1")
        A("v_lshl_add_u32 v46, v8, 3, v46")
        A("s_lshl_b32 s60, s%d, 2" % sG)
        A("s_add_u32 s60, s60, s%d" % sB)
        A("s_mul_i32 s60, s60, 20480")
        A("s_add_u32 s%d, s60, s%d" % (sX[10], sX[7]))
        for nt in range(5):
            A.vmem("buffer_load_dwordx2 %s, v46, %s, s%d offen offset:%d" % (vr(36 + 2 * nt, 2), sr(X, 4), sX[10], 32 * nt))
        self.bsync(2, 10, 11)
        A("v_mov_b32 v14, v15")

        def wfr(step, base, dst, off):
            for nt in range(5):
                for rd in range(2):
                    A("ds_read_b64_tr_b16 %s, v%d offset:%d" % (vr(dst + 4 * nt + 2 * rd, 2), base, off + rd * 1280 + nt * 32))
        wfr(0, 14, WD, 0)
        for u in range(27):
            if u + 1 < 27:
                if (u + 1) % 12 == 0: A("v_add_u32 v14, 0x%x, v14" % 61440)
                wfr(u + 1, 14, WD + 20 * ((u + 1) % 2), ((u + 1) % 12) * 5120)
                A("s_waitcnt lgkmcnt(10)")
            else:
                A("s_waitcnt lgkmcnt(0)")
            A.wait_vm(uid[u])
            for nt in range(5):
                acc = vr(GG + 4 * nt, 4)
                A("v_mfma_f32_16x16x32_bf16 %s, %s, %s, %s" % (acc, vr(WD + 20 * (u % 2) + 4 * nt, 4), vr(UF + 4 * u, 4), "0" if u == 0 else acc))
        self.bsync(3, 10, 11)
        for i in range(4): wdma(WO, i)
        T = 56
        A("v_mov_b32 v8, 0x%x" % f2u(-LOG2E))
        for i in range(10): A("v_pk_mul_f32 %s, %s, v[8:9] op_sel_hi:[1,0]" % (vr(T + 2 * i, 2), vr(GG + 2 * i, 2)))
        for i in range(20): A("v_exp_f32 v%d, v%d" % (T + i, T + i))
        for i in range(10): A("v_pk_add_f32 %s, %s, 1.0 op_sel_hi:[1,0]" % (vr(T + 2 * i, 2), vr(T + 2 * i, 2)))
        for i in range(20): A("v_rcp_f32 v%d, v%d" % (T + i, T + i))
        for i in range(10): A("v_pk_mul_f32 %s, %s, %s" % (vr(GG + 2 * i, 2), vr(GG + 2 * i, 2), vr(T + 2 * i, 2)))
        self.stamp(11)
        A("s_barrier")
        A("s_barrier")
        A("s_barrier")
        wdma(WO, 4)
        A("s_waitcnt vmcnt(0)")

    def tail(self):
        A = self.A
        A("L_tail:")
        AC, OF, WP = 196, 216, 56
        A("s_barrier")
        self.lane_tr(9, 10, 11)
        A("v_lshrrev_b32 v15, 1, v9")
        A("v_lshlrev_b32 v15, 4, v15")
        A("v_and_b32 v13, 1, v9")
        A("v_lshl_add_u32 v15, v13, 2, v15")
        A("v_add_u32 v15, v15, v10")
        A("v_mul_u32_u24 v15, 160, v15")
        A("v_lshl_add_u32 v15, v11, 3, v15")
        A("s_lshr_b32 s62, s%d, 2" % sW)
        A("s_mul_i32 s60, s62, 51200")
        A("v_add_u32 v15, s60, v15")

        def wfr(s):
            for nt in range(5):
                for rd in range(2):
                    A("ds_read_b64_tr_b16 %s, v15 offset:%d" % (vr(WP + 20 * (s % 7) + 4 * nt + 2 * rd, 2), s * 5120 + rd * 1280 + nt * 32))
        for s in range(7): wfr(s)
        A("v_lshlrev_b32 v4, 2, v2")
        A("s_lshl_b32 s60, s%d, 7" % sG)
        A("s_add_u32 s60, s60, %d" % F_H5)
        A("s_lshl_b32 s61, s62, 4")
        A("s_lshl_b32 s4, 0xffff, s61")
        A("s_mov_b32 s5, 0")
        self.poll(4, "s60", 8, sleep=1)
        self.stamp(12)
        A("s_mul_i32 s60, s%d, 20" % sG)
        A("s_mul_i32 s61, s62, 10")
        A("s_add_u32 s60, s60, s61")
        A("s_lshl_b32 s60, s60, 12")
        A("s_and_b32 s61, s%d, 3" % sW)
        A("s_lshl_b32 s61, s61, 10")
        A("s_add_u32 s60, s60, s61")
        A("s_add_u32 s60, s60, 0x%x" % OB)
        A.vm = 0
        oid = {}
        for s in range(10):
            oid[s] = A.vmem("buffer_load_dwordx4 %s, v7, %s, s60 offen sc1" % (vr(OF + 4 * s, 4), sr(WS, 4)))
            A("s_add_u32 s60, s60, 4096")
        A("s_waitcnt lgkmcnt(0)")
        for s in range(10):
            A.wait_vm(oid[s])
            if s == 7: A("s_waitcnt lgkmcnt(15)")
            if s == 8: A("s_waitcnt lgkmcnt(10)")
            if s == 9: A("s_waitcnt lgkmcnt(0)")
            for nt in range(5):
                acc = vr(AC + 4 * nt, 4)
                A("v_mfma_f32_16x16x32_bf16 %s, %s, %s, %s" % (acc, vr(WP + 20 * (s % 7) + 4 * nt, 4), vr(OF + 4 * s, 4), "0" if s == 0 else acc))
            if s < 3: wfr(s + 7)
            if s == 6: A("s_waitcnt lgkmcnt(10)")
        A("s_and_b32 s61, s%d, 3" % sW)
        A("s_mul_i32 s61, s61, 5120")
        A("s_add_u32 s61, s61, %d" % FINX)
        A("v_add_u32 v8, s61, v7")
        A("s_cmp_ge_u32 s%d, 4" % sW)
        A("s_cbranch_scc1 L_finB")
        for nt in range(5):
            A("ds_write_b128 v8, %s offset:%d" % (vr(AC + 4 * nt, 4), 1024 * nt))
        A("s_waitcnt lgkmcnt(0)")
        A("s_barrier")
        A("s_branch L_done")
        A("L_finB:")
        A("s_mov_b32 s61, 0xffff0000")
        for i in range(10):
            A("v_lshlrev_b32 v%d, 16, v%d" % (76 + 2 * i, 36 + i))
            A("v_and_b32 v%d, s61, v%d" % (77 + 2 * i, 36 + i))
        A("s_barrier")
        for nt in range(5):
            A("ds_read_b128 %s, v8 offset:%d" % (vr(56 + 4 * nt, 4), 1024 * nt))
        A("s_waitcnt lgkmcnt(0)")
        for i in range(10):
            A("v_pk_add_f32 %s, %s, %s" % (vr(AC + 2 * i, 2), vr(AC + 2 * i, 2), vr(56 + 2 * i, 2)))
        for i in range(10):
            A("v_pk_fma_f32 %s, %s, %s, %s" % (vr(AC + 2 * i, 2), vr(AC + 2 * i, 2), vr(16 + 2 * i, 2), vr(76 + 2 * i, 2)))
        for i in range(10):
            A("v_cvt_pk_bf16_f32 v%d, v%d, v%d" % (56 + i, AC + 2 * i, AC + 2 * i + 1))
        for nt in range(5):
            A("buffer_store_dwordx2 %s, v46, %s, s%d offen offset:%d" % (vr(56 + 2 * nt, 2), sr(OUT, 4), sX[10], 32 * nt))
        A("L_done:")
        if self.prof:
            A("s_memrealtime s[90:91]")
            A("s_waitcnt lgkmcnt(0)")
            A("s_lshl_b32 s60, s2, 3")
            A("s_add_u32 s60, s60, s%d" % sW)
            A("s_lshl_b32 s60, s60, 6")
            A("s_add_u32 s60, s60, 0x%x" % STAMPS)
            for i in range(13): A("v_mov_b32 v%d, s%d" % (16 + i, STAMP0 + 2 * i))
            A("v_mov_b32 v29, s90")
            A("v_mov_b32 v30, 0"); A("v_mov_b32 v31, 0"); A("v_mov_b32 v8, 0")
            A("s_mov_b64 exec, 1")
            for i in range(4):
                A("buffer_store_dwordx4 %s, v8, %s, s60 offen offset:%d" % (vr(16 + 4 * i, 4), sr(WS, 4), 16 * i))
        A("L_end:")
        A("s_endpgm")

    def build(self):
        A = self.A
        self.prologue()
        self.early_duties()
        self.layernorm()
        self.phaseA_setup()
        A("s_and_b32 s60, s%d, 3" % sW)
        A("s_cmp_lg_u32 s60, 3")
        A("s_cbranch_scc1 L_a1Q")
        A("s_cmp_eq_u32 s%d, s%d" % (sW, sLDR))
        A("s_cbranch_scc1 L_a1L")
        A("s_cmp_eq_u32 s%d, 1" % sKVD)
        A("s_cbranch_scc1 L_a1K")
        A("s_cmp_eq_u32 s%d, 2" % sKVD)
        A("s_cbranch_scc1 L_a1V")
        self.a1_variant("I")
        for r in "LKVQ":
            A("L_a1%s:" % r)
            self.a1_variant(r)
        self.zphase()
        self.roleA()
        self.fallback()
        self.roleB()
        self.tail()
        body, npad = pad_hazards(A.lines)
        head = open("recurrent_scan__grouped_kv_mqa__mixer_gmlp__prompt.s.ref").read().split("; Override launch")[0]
        out = head + "; @launch grid=(256,1,1) block=(512,1,1) lds=%d\n" % LDS_BYTES
        out += '.amdgcn_target "amdgcn-amd-amdhsa--gfx950"\n.text\n.globl %s\n.p2align 8\n.type %s,@function\n%s:\n' % (KNAME, KNAME, KNAME)
        out += "\n".join(body) + "\n"
        out += """.section .rodata,"a"
.p2align 6
.amdhsa_kernel %s
  .amdhsa_next_free_vgpr 256
  .amdhsa_next_free_sgpr 102
  .amdhsa_accum_offset 256
  .amdhsa_group_segment_fixed_size 0
  .amdhsa_kernarg_size 104
  .amdhsa_user_sgpr_count 2
  .amdhsa_user_sgpr_kernarg_segment_ptr 1
  .amdhsa_system_sgpr_workgroup_id_x 1
.end_amdhsa_kernel
""" % KNAME
        return out, npad


if __name__ == "__main__":
    ap = argparse.ArgumentParser()
    ap.add_argument("-o", default="k.s")
    ap.add_argument("--prof", action="store_true")
    ap.add_argument("--fb", action="store_true")
    a = ap.parse_args()
    txt, npad = Gen(prof=a.prof, force_fb=a.fb).build()
    open(a.o, "w").write(txt)
    print("wrote", a.o, len(txt), "bytes; nop states inserted:", npad)
```

```python
import sys, struct, argparse
from asmlib import Asm, pad_hazards, vr, sr

KNAME = "recurrent_scan__grouped_kv_mqa__mixer_gmlp__prompt_kernel"


def f2u(x):
    return struct.unpack("<I", struct.pack("<f", x))[0]


X, WQ, WKV, WIN, WSP, BSP, WOUT, WO, OUT, WS, DBG = 8, 12, 16, 20, 24, 28, 32, 36, 40, 44, 48
sW, sG, sJ, sU0, sNU, sKVD, sKVT, sLDR = 52, 53, 54, 55, 56, 57, 58, 59
sT = [60, 61, 62, 63]
sM = 4
sCNT = 3
sX = list(range(90, 102))
STAMP0 = 64

F_K, F_V, F_H3, F_H2, F_H4, F_H5 = 0, 256, 1024, 8192, 12288, 16384
FLAG_BYTES = 20480
STATS = 0x8000
KVB = 0x40000
Z2N = 0x100000
UB = 0x500000
OB = 0x900000
STAMPS = 0xC00000
WS_BYTES = 0x1000000

RING = 81920
WKVL = 133120
QS = 133120
QP = 168
ST = 143872
PX = 114688
TRS = 98304
EXCH = 81920
MAREA = 155648
CNTS = 159744
FINX = 102400
LDS_BYTES = 163840

LOG2E = 1.4426950408889634
QSCALE = (20 ** -0.5) * LOG2E
GA = -2.0 * 0.7978845608028654 * LOG2E
GB = GA * 0.044715


class Gen:
    def __init__(self, prof=False, stop=None, force_fb=False):
        self.A = Asm()
        self.prof = prof
        self.stop = stop
        self.force_fb = force_fb
        self.nstamp = 0

    def stamp(self, i):
        if self.prof:
            self.A("s_memrealtime %s" % sr(STAMP0 + 2 * i, 2))

    def srd(self, d, p, nbytes):
        A = self.A
        A("s_mov_b32 s%d, s%d" % (d, p))
        A("s_mov_b32 s%d, s%d" % (d + 1, p + 1))
        A("s_mov_b32 s%d, 0x%x" % (d + 2, nbytes))
        A("s_mov_b32 s%d, 0x00020000" % (d + 3))

    def poll(self, vaddr, soff, vtmp, srd=WS, sleep=2, code=1):
        A = self.A
        L, D = A.label("Lpoll"), A.label("Lpolld")
        A("s_mov_b32 s%d, 0x20000" % sCNT)
        A(L + ":")
        A("buffer_load_dword v%d, v%d, %s, %s offen sc1" % (vtmp, vaddr, sr(srd, 4), soff))
        A("s_waitcnt vmcnt(0)")
        A("v_cmp_ne_u32 vcc, 0, v%d" % vtmp)
        A("s_and_b64 s[6:7], vcc, s[4:5]")
        A("s_cmp_eq_u64 s[6:7], s[4:5]")
        A("s_cbranch_scc1 " + D)
        A("s_sub_u32 s%d, s%d, 1" % (sCNT, sCNT))
        A("s_cbranch_scc1 " + D)
        A("s_sleep %d" % sleep)
        A("s_branch " + L)
        A(D + ":")

    def bsync(self, idx, va, vb, n=4):
        A = self.A
        L, D = A.label("Lbs"), A.label("Lbsd")
        A("s_waitcnt lgkmcnt(0)")
        A("v_mov_b32 v%d, 0x%x" % (va, CNTS + 4 * idx))
        A("v_mov_b32 v%d, 1" % vb)
        A("s_mov_b64 exec, 1")
        A("ds_add_u32 v%d, v%d" % (va, vb))
        A("s_mov_b64 exec, -1")
        A("s_mov_b32 s%d, 0x100000" % sCNT)
        A(L + ":")
        A("ds_read_b32 v%d, v%d" % (vb, va))
        A("s_waitcnt lgkmcnt(0)")
        A("v_readfirstlane_b32 s6, v%d" % vb)
        A("s_cmp_ge_u32 s6, %d" % n)
        A("s_cbranch_scc1 " + D)
        A("s_sub_u32 s%d, s%d, 1" % (sCNT, sCNT))
        A("s_cbranch_scc1 " + D)
        A("s_sleep 1")
        A("s_branch " + L)
        A(D + ":")

    def flag_store(self, vaddr_tmp, vval, off_sreg):
        A = self.A
        A("v_mov_b32 v%d, 0" % vaddr_tmp)
        A("s_mov_b64 exec, 1")
        A.vmem("buffer_store_dword v%d, v%d, %s, s%d offen sc1" % (vval, vaddr_tmp, sr(WS, 4), off_sreg))
        A("s_mov_b64 exec, -1")

    def lane_tr(self, vg, vr_, vc):
        A = self.A
        A("v_lshrrev_b32 v%d, 4, v1" % vg)
        A("v_bfe_u32 v%d, v1, 2, 2" % vr_)
        A("v_and_b32 v%d, 3, v1" % vc)

    def addr160(self, dst, n, perm, t0, t1):
        A = self.A
        A("v_add_u32 v%d, %d, v1" % (t0, 64 * n))
        A("v_mul_u32_u24 v%d, 6554, v%d" % (t1, t0))
        A("v_lshrrev_b32 v%d, 16, v%d" % (t1, t1))
        A("v_mul_u32_u24 v%d, 10, v%d" % (dst, t1))
        A("v_sub_u32 v%d, v%d, v%d" % (t0, t0, dst))
        A("v_lshlrev_b32 v%d, 4, v%d" % (t0, t0))
        if perm:
            A("v_and_b32 v%d, 1, v%d" % (dst, t1))
            A("v_lshlrev_b32 v%d, 2, v%d" % (dst, dst))
            A("v_and_or_b32 v%d, v%d, 56, v%d" % (dst, t1, dst))
            A("v_bfe_u32 v%d, v%d, 1, 2" % (t1, t1))
            A("v_or_b32 v%d, v%d, v%d" % (t1, t1, dst))
        A("v_mul_u32_u24 v%d, 1280, v%d" % (t1, t1))
        A("v_add_u32 v%d, v%d, v%d" % (dst, t1, t0))

    def wave_max(self, v, t):
        A = self.A
        for m in ("row_shr:1", "row_shr:2", "row_shr:4", "row_shr:8"):
            A("v_max_f32_dpp v%d, v%d, v%d %s row_mask:0xf bank_mask:0xf" % (v, v, v, m))
        A("v_max_f32_dpp v%d, v%d, v%d row_bcast:15 row_mask:0xa bank_mask:0xf" % (v, v, v))
        A("v_max_f32_dpp v%d, v%d, v%d row_bcast:31 row_mask:0xc bank_mask:0xf" % (v, v, v))

    def prologue(self):
        A = self.A
        A("s_cmp_ge_u32 s2, 256")
        A("s_cbranch_scc1 L_end")
        A("s_load_dwordx16 s[64:79], s[0:1], 0")
        A("s_load_dwordx8 s[80:87], s[0:1], 64")
        A("s_load_dwordx2 s[88:89], s[0:1], 96")
        A("v_lshrrev_b32 v4, 6, v0")
        A("v_and_b32 v1, 63, v0")
        A("v_readfirstlane_b32 s%d, v4" % sW)
        A("v_and_b32 v2, 31, v0")
        A("v_bfe_u32 v3, v0, 5, 1")
        A("s_and_b32 s60, s2, 7")
        A("s_lshr_b32 s61, s2, 3")
        A("s_lshr_b32 s%d, s60, 1" % sG)
        A("s_lshl_b32 s%d, s%d, 3" % (sG, sG))
        A("s_lshr_b32 s62, s61, 2")
        A("s_add_u32 s%d, s%d, s62" % (sG, sG))
        A("s_and_b32 s%d, s60, 1" % sJ)
        A("s_lshl_b32 s%d, s%d, 2" % (sJ, sJ))
        A("s_and_b32 s62, s61, 3")
        A("s_add_u32 s%d, s%d, s62" % (sJ, sJ))
        A("s_mov_b32 s6, 0x0B070400")
        A("s_mov_b32 s7, 0x1815120E")
        A("s_lshl_b32 s62, s%d, 3" % sJ)
        A("s_lshr_b64 s[6:7], s[6:7], s62")
        A("s_and_b32 s%d, s6, 0xff" % sU0)
        A("s_lshr_b32 s62, 0x15, s%d" % sJ)
        A("s_and_b32 s62, s62, 1")
        A("s_add_u32 s%d, s62, 3" % sNU)
        A("s_lshl_b32 s62, s%d, 2" % sJ)
        A("s_lshr_b32 s62, 0x06205010, s62")
        A("s_and_b32 s%d, s62, 3" % sKVD)
        A("s_bfe_u32 s%d, s62, 0x10002" % sKVT)
        A("s_cmp_eq_u32 s%d, 1" % sKVT)
        A("s_cselect_b32 s%d, 3, 7" % sLDR)
        A("v_lshrrev_b32 v4, 3, v1")
        A("v_mul_u32_u24 v4, 1280, v4")
        A("s_and_b32 s62, s%d, 1" % sW)
        A("s_lshl_b32 s62, s62, 2")
        A("v_lshrrev_b32 v5, 4, v1")
        A("v_or_b32 v5, s62, v5")
        A("v_and_b32 v6, 7, v1")
        A("v_xor_b32 v5, v5, v6")
        A("v_lshl_add_u32 v4, v5, 4, v4")
        A("s_lshl_b32 s62, s%d, 3" % sG)
        A("s_add_u32 s62, s62, s%d" % sW)
        A("s_mul_i32 s63, s62, 10240")
        A("v_lshlrev_b32 v7, 4, v1")
        A("s_waitcnt lgkmcnt(0)")
        self.srd(X, 64, 2621440)
        for cg in range(10):
            A.vmem("buffer_load_dwordx4 %s, v4, %s, s63 offen offset:%d" % (vr(176 + 4 * cg, 4), sr(X, 4), 128 * cg))
        self.srd(WQ, 66, 819200)
        A("s_cmp_eq_u32 s%d, 2" % sKVD)
        A("s_cselect_b32 s%d, s70, s68" % WKV)
        A("s_cselect_b32 s%d, s71, s69" % (WKV + 1))
        A("s_mov_b32 s%d, 25600" % (WKV + 2))
        A("s_mov_b32 s%d, 0x00020000" % (WKV + 3))
        self.srd(WO, 72, 819200)
        self.srd(WIN, 76, 2211840)
        self.srd(WSP, 78, 8388608)
        self.srd(BSP, 80, 4096)
        self.srd(WOUT, 82, 1105920)
        self.srd(OUT, 84, 2621440)
        self.srd(DBG, 86, 256)
        self.srd(WS, 88, WS_BYTES)
        self.stamp(0)
        if self.prof: A("s_memtime s[0:1]")
        for r in (8, 9, 10, 11, 12, 46): A("v_mov_b32 v%d, 0" % r)

    def early_duties(self):
        A = self.A
        Lnl, Lnk, Lnz, Lnp, Ld = (A.label("Le") for _ in range(5))
        A("s_cmp_eq_u32 s%d, s%d" % (sW, sLDR))
        A("s_cbranch_scc0 " + Lnl)
        for n in range(5):
            self.addr160(8 + n, n, True, 14, 15)
        A("s_mul_i32 s%d, s%d, 160" % (sX[0], sJ))
        for ch in range(5):
            self.wq_dma(ch)
        A("s_branch " + Ld)
        A(Lnl + ":")
        A("s_and_b32 s60, s%d, 3" % sW)
        A("s_cmp_eq_u32 s60, 3")
        A("s_cbranch_scc0 " + Lnk)
        A("s_cmp_eq_u32 s%d, 0" % sKVD)
        A("s_cbranch_scc1 " + Lnz)
        for n in range(25):
            A("s_mov_b32 m0, %d" % (WKVL + 1024 * n))
            A("s_mov_b32 s60, %d" % (1024 * n))
            A("buffer_load_dwordx4 v7, %s, s60 offen lds" % sr(WKV, 4))
        A("s_branch " + Ld)
        A(Lnz + ":")
        A("s_cmp_eq_u32 s2, 0")
        A("s_cbranch_scc0 " + Ld)
        for i in range(4):
            A("v_mov_b32 v%d, 0" % (8 + i))
        for n in range(FLAG_BYTES // 1024):
            A("s_mov_b32 s60, %d" % (1024 * n))
            A("buffer_store_dwordx4 v[8:11], v7, %s, s60 offen sc1" % sr(WS, 4))
        A("s_waitcnt vmcnt(0)")
        A("v_mov_b32 v12, 1")
        A("s_mov_b64 exec, 1")
        A("buffer_store_dword v12, v8, %s, 0 offen sc1" % sr(DBG, 4))
        A("s_mov_b64 exec, -1")
        A("s_branch " + Ld)
        A(Lnk + ":")
        A("s_cmp_eq_u32 s%d, 0" % sW)
        A("s_cbranch_scc0 " + Lnp)
        A("v_mov_b32 v8, 0")
        A("v_lshlrev_b32 v9, 2, v1")
        A("v_add_u32 v9, 0x%x, v9" % CNTS)
        A("ds_write_b32 v9, v8")
        A("s_branch " + Ld)
        A(Lnp + ":")
        A("s_cmp_eq_u32 s%d, 5" % sW)
        A("s_cbranch_scc0 " + Ld)
        A("s_getpc_b64 s[6:7]")
        A("L_pc:")
        A("s_lshr_b32 s60, s2, 3")
        A("s_lshl_b32 s60, s60, 10")
        A("v_add_u32 v8, s60, v7")
        A("v_add_u32 v9, 0x8000, v8")
        A("v_min_u32 v8, L_end-L_pc-16, v8")
        A("v_min_u32 v9, L_end-L_pc-16, v9")
        A("global_load_dwordx4 v[220:223], v8, s[6:7]")
        A("global_load_dwordx4 v[224:227], v9, s[6:7]")
        A(Ld + ":")

    def wq_dma(self, ch):
        A = self.A
        for n in range(10):
            A("s_mov_b32 m0, %d" % (RING + (ch % 5) * 10240 + 1024 * n))
            A("s_add_u32 s60, s%d, %d" % (sX[0], (ch * 64 + (n // 5) * 32) * 1280))
            A.vmem("buffer_load_dwordx4 v%d, %s, s60 offen lds" % (8 + n % 5, sr(WQ, 4)))

    def layernorm(self):
        A = self.A
        R = 176
        Lw, Lk, Lg = A.label("Lw"), A.label("Lw"), A.label("Lw")
        A("s_cmp_eq_u32 s%d, s%d" % (sW, sLDR))
        A("s_cbranch_scc1 " + Lw)
        A("s_and_b32 s60, s%d, 3" % sW)
        A("s_cmp_eq_u32 s60, 3")
        A("s_cselect_b32 s60, s%d, 0" % sKVD)
        A("s_cmp_lg_u32 s60, 0")
        A("s_cbranch_scc1 " + Lk)
        A("s_waitcnt vmcnt(0)")
        A("s_branch " + Lg)
        A(Lk + ":")
        A("s_waitcnt vmcnt(25)")
        A("s_branch " + Lg)
        A(Lw + ":")
        A("s_waitcnt vmcnt(50)")
        A(Lg + ":")
        self.stamp(1)
        A("s_mov_b32 s60, 0x3f803f80")
        for i in range(4):
            A("v_mov_b32 v%d, 0" % (16 + i))
            A("v_mov_b32 v%d, 0" % (20 + i))
        for i in range(40):
            A("v_dot2_f32_bf16 v%d, v%d, s60, v%d" % (16 + i % 4, R + i, 16 + i % 4))
            A("v_dot2_f32_bf16 v%d, v%d, v%d, v%d" % (20 + i % 4, R + i, R + i, 20 + i % 4))
        for b in (16, 20):
            A("v_add_f32 v%d, v%d, v%d" % (b, b, b + 1))
            A("v_add_f32 v%d, v%d, v%d" % (b + 2, b + 2, b + 3))
        for b in (16, 20):
            A("v_add_f32 v%d, v%d, v%d" % (b, b, b + 2))
        for m in ("quad_perm:[1,0,3,2]", "quad_perm:[2,3,0,1]", "row_half_mirror"):
            for b in (16, 20):
                A("v_add_f32_dpp v%d, v%d, v%d %s row_mask:0xf bank_mask:0xf" % (b, b, b, m))
        A("v_mul_f32 v16, 0x%x, v16" % f2u(1.0 / 640))
        A("v_mul_f32 v20, 0x%x, v20" % f2u(1.0 / 640))
        A("v_fma_f32 v20, -v16, v16, v20")
        A("v_max_f32 v20, 0, v20")
        A("v_add_f32 v20, 0x%x, v20" % f2u(1e-5))
        A("v_rsq_f32 v20, v20")
        A("v_mul_f32 v21, -v16, v20".replace("v_mul_f32 v21, -v16", "v_mul_f32_e64 v21, -v16"))
        A("s_mov_b32 s60, 0xffff0000")
        A("s_lshl_b32 s61, s%d, 10" % sW)
        A("v_add_u32 v22, s61, v7")
        A("v_add_u32 v23, 0x10000, v22")
        for cg in range(10):
            for i in range(4):
                r = R + 4 * cg + i; t = 24 + 2 * i
                A("v_lshlrev_b32 v%d, 16, v%d" % (t, r))
                A("v_and_b32 v%d, s60, v%d" % (t + 1, r))
            for i in range(4):
                t = 24 + 2 * i
                A("v_pk_fma_f32 %s, %s, v[20:21], v[20:21] op_sel:[0,0,1] op_sel_hi:[1,0,1]" % (vr(t, 2), vr(t, 2)))
            for i in range(4):
                r = R + 4 * cg + i; t = 24 + 2 * i
                A("v_cvt_pk_bf16_f32 v%d, v%d, v%d" % (r, t, t + 1))
            if cg < 8:
                A("ds_write_b128 v22, %s offset:%d" % (vr(R + 4 * cg, 4), 8192 * cg))
            else:
                A("ds_write_b128 v23, %s offset:%d" % (vr(R + 4 * cg, 4), 8192 * (cg - 8)))
        self.stamp(2)

    XF, WB, ACC, ACC1 = 16, 176, 208, 224
    vXA, vTR, vZ, vTZ = 240, 244, 245, 246
    Z2P = 248
    ZSTEP = {2: [0], 4: [1], 6: [2], 8: [3], 10: [4, 5, 6, 7]}

    def phaseA_setup(self):
        A = self.A
        A("s_lshr_b32 s60, s%d, 2" % sW)
        A("s_lshl_b32 s60, s60, 12")
        A("v_lshrrev_b32 v4, 3, v2")
        A("v_lshlrev_b32 v4, 10, v4")
        A("v_and_b32 v5, 7, v2")
        A("v_lshl_add_u32 v4, v5, 7, v4")
        A("v_bfe_u32 v5, v2, 1, 3")
        A("v_xor_b32 v5, v5, v3")
        A("v_lshl_add_u32 v4, v5, 4, v4")
        A("v_add_u32 v%d, s60, v4" % self.vXA)
        for k in range(1, 4):
            A("v_xor_b32 v%d, %d, v%d" % (self.vXA + k, 32 * k, self.vXA))
        A("v_lshrrev_b32 v4, 4, v1")
        A("v_lshlrev_b32 v5, 2, v4")
        A("v_and_b32 v6, 15, v1")
        A("v_xor_b32 v5, v5, v6")
        A("v_mul_u32_u24 v4, 3456, v4")
        A("v_lshl_add_u32 v%d, v5, 4, v4" % self.vZ)
        self.lane_tr(4, 5, 6)
        A("v_lshrrev_b32 v14, 1, v4")
        A("v_lshl_add_u32 v14, v14, 3, v5")
        A("v_lshlrev_b32 v15, 8, v14")
        A("s_and_b32 s60, s%d, 3" % sW)
        A("v_xor_b32 v13, s60, v5")
        A("v_lshl_add_u32 v15, v13, 6, v15")
        A("v_and_b32 v13, 1, v4")
        A("v_lshl_add_u32 v15, v13, 5, v15")
        A("v_lshl_add_u32 v%d, v6, 3, v15" % self.vTZ)
        A("v_add_u32 v%d, 0x10000, v%d" % (self.vTZ + 1, self.vTZ))
        A("s_mul_i32 s60, s%d, %d" % (sW, 4 * 3456))
        A("s_lshl_b32 s61, s%d, 6" % sU0)
        A("s_add_u32 s%d, s60, s61" % sX[2])
        A("s_add_u32 s%d, s%d, %d" % (sX[1], sX[2], 27 * 64))
        A("s_lshl_b32 s%d, s%d, 10" % (sX[3], sW))

    def z_dma(self, c):
        A = self.A
        base = sX[1] if c < 10 else sX[2]
        ids = []
        for half in range(2):
            A("s_add_u32 m0, s%d, %d" % (sX[3], (c % 8) * 16384 + half * 8192))
            A("s_add_u32 s60, s%d, %d" % (base, ((c % 10) * 64 + half * 32) * 3456))
            ids.append(A.vmem("buffer_load_dwordx4 v%d, %s, s60 offen lds" % (self.vZ, sr(WIN, 4))))
        self.zid[c] = ids[-1]

    def x_reads(self, s):
        A = self.A
        if s == 8:
            for k in range(4):
                A("v_add_u32 v%d, 0x10000, v%d" % (self.vXA + k, self.vXA + k))
        for k in range(4):
            A("ds_read_b128 %s, v%d offset:%d" % (vr(self.XF + 16 * s + 4 * k, 4), self.vXA + k, 8192 * (s % 8)))

    def z_reads(self, c):
        A = self.A
        sl = c % 8
        for k in range(4):
            for rd in range(2):
                A("ds_read_b64_tr_b16 %s, v%d offset:%d" % (vr(self.WB + 16 * (c % 2) + 4 * k + 2 * rd, 2),
                  self.vTZ + sl // 4, (sl % 4) * 16384 + k * 4096 + rd * 1024))

    def mfmas(self, acc, s, buf, swap=False):
        A = self.A
        for k in range(4):
            w = vr(self.WB + 16 * buf + 4 * k, 4); x = vr(self.XF + 16 * s + 4 * k, 4)
            c = "0" if (s == 0 and k == 0) else vr(acc, 16)
            a, b = (x, w) if swap else (w, x)
            A("v_mfma_f32_32x32x16_bf16 %s, %s, %s, %s" % (vr(acc, 16), a, b, c))

    def a1_variant(self, role):
        A = self.A
        A.vm = 0
        self.zid = {}
        wid = {}
        if role == "L":
            for ch in range(5):
                A.vm += 10; wid[ch] = A.vm
        if role == "Q":
            A("v_lshl_add_u32 v14, v5, 0, v14")
            A("v_mul_u32_u24 v14, 160, v14")
            A("s_and_b32 s60, s%d, 3" % sW)
            A("s_lshl_b32 s60, s60, 6")
            A("s_add_u32 s60, s60, %d" % RING)
            A("v_lshl_add_u32 v14, v13, 5, v14")
            A("v_lshl_add_u32 v14, v6, 3, v14")
            A("v_add_u32 v%d, s60, v14" % self.vTR)
        elif role in "KV":
            A("v_mul_u32_u24 v14, 40, v14")
            A("v_lshl_add_u32 v14, v13, 5, v14")
            A("v_lshl_add_u32 v14, v6, 3, v14")
            A("v_add_u32 v%d, 0x%x, v14" % (self.vTR, WKVL))
            A("s_waitcnt vmcnt(0)")
        for s in range(11):
            if role == "L" and s < 10:
                A.wait_vm(wid[s])
            if s == 10:
                A.wait_vm(self.zid[0])
            A("s_waitcnt lgkmcnt(0)")
            A("s_barrier")
            if role == "L" and 1 <= s <= 5:
                self.wq_dma(s + 4); wid[s + 4] = A.vm
            for c in self.ZSTEP.get(s, []):
                self.z_dma(c)
            if role in "KVI" and s == 6:
                A("v_mov_b32 v8, 0")
                A.vmem("buffer_load_dword v9, v8, %s, 0 offen sc1" % sr(DBG, 4))
                rid = A.vm
            if s < 10:
                self.x_reads(s)
                if role in "QKV":
                    for k in range(4):
                        for rd in range(2):
                            off = ((s % 5) * 10240 + k * 2560 + rd * 160) if role == "Q" else ((4 * s + k) * 640 + rd * 160)
                            A("ds_read_b64_tr_b16 %s, v%d offset:%d" % (vr(self.WB + 16 * (s % 2) + 4 * k + 2 * rd, 2), self.vTR, off))
            else:
                self.z_reads(0)
            if s >= 1 and role in "QKV":
                self.mfmas(self.ACC, s - 1, (s - 1) % 2, swap=(role == "V"))
        acc = self.ACC
        if role == "Q":
            A("v_mov_b32 v8, 0x%x" % f2u(QSCALE))
            A("s_lshr_b32 s60, s%d, 2" % sW)
            A("s_mul_i32 s60, s60, %d" % (32 * QP))
            A("s_and_b32 s61, s%d, 3" % sW)
            A("s_lshl_b32 s62, s61, 6")
            A("s_add_u32 s60, s60, s62")
            A("s_add_u32 s60, s60, %d" % QS)
            A("v_mul_u32_u24 v9, %d, v2" % QP)
            A("v_lshl_add_u32 v9, v3, 3, v9")
            A("v_add_u32 v9, s60, v9")
            for i in range(8):
                A("v_pk_mul_f32 %s, %s, v[8:9] op_sel_hi:[1,0]" % (vr(acc + 2 * i, 2), vr(acc + 2 * i, 2)))
            for i in range(8):
                A("v_cvt_pk_bf16_f32 v%d, v%d, v%d" % (acc + i, acc + 2 * i, acc + 2 * i + 1))
            A("ds_write_b64 v9, %s" % vr(acc, 2))
            A("ds_write_b64 v9, %s offset:16" % vr(acc + 2, 2))
            L = A.label("Lq")
            A("s_cmp_eq_u32 s61, 2")
            A("s_cbranch_scc1 " + L)
            A("ds_write_b64 v9, %s offset:32" % vr(acc + 4, 2))
            A("ds_write_b64 v9, %s offset:48" % vr(acc + 6, 2))
            A(L + ":")
        if role in "KVI":
            L = A.label("Lrdy")
            A.wait_vm(rid)
            A("v_readfirstlane_b32 s60, v9")
            A("s_cmp_lg_u32 s60, 0")
            A("s_cbranch_scc1 " + L)
            A("s_mov_b64 s[4:5], 1")
            self.poll(8, "0", 9, srd=DBG)
            A(L + ":")
        if role in "KV":
            A("s_lshl_b32 s60, s%d, 1" % sG)
            A("s_add_u32 s60, s60, s%d" % sKVT)
            A("s_lshl_b32 s61, s60, 12")
            A("s_add_u32 s61, s61, 0x%x" % KVB)
            A("s_lshl_b32 s%d, s60, 2" % sX[4])
        if role == "K":
            for i in range(6):
                A("v_cvt_pk_bf16_f32 v%d, v%d, v%d" % (acc + i, acc + 2 * i, acc + 2 * i + 1))
            A("v_cmp_eq_u32 vcc, 0, v3")
            A("v_cndmask_b32 v%d, 0, v%d, vcc" % (acc + 4, acc + 4))
            A("v_cndmask_b32 v%d, 0, v%d, vcc" % (acc + 5, acc + 5))
            A("buffer_store_dwordx4 %s, v7, %s, s61 offen sc1" % (vr(acc, 4), sr(WS, 4)))
            A("v_lshlrev_b32 v8, 3, v2")
            A("s_mov_b32 exec_hi, 0")
            A("buffer_store_dwordx2 %s, v8, %s, s61 offen offset:3072 sc1" % (vr(acc + 4, 2), sr(WS, 4)))
            A("s_mov_b64 exec, -1")
            A("v_mov_b32 v10, 0")
            for i in range(6):
                A("v_dot2_f32_bf16 v10, v%d, v%d, v10" % (acc + i, acc + i))
            A("v_mov_b32 v11, v10")
            A("v_permlane32_swap_b32 v10, v11")
            A("v_add_f32 v10, v10, v11")
        if role == "V":
            A("v_mov_b32 v10, 0")
            for i in range(8):
                A("v_max3_f32 v10, |v%d|, |v%d|, v10" % (acc + 2 * i, acc + 2 * i + 1))
            A("v_cmp_gt_u32 vcc, 20, v2")
            A("v_cndmask_b32 v10, 0, v10, vcc")
            for i in range(8):
                A("v_cvt_pk_bf16_f32 v%d, v%d, v%d" % (acc + i, acc + 2 * i, acc + 2 * i + 1))
            A("v_cmp_eq_u32 vcc, 20, v2")
            A("v_mov_b32 v11, 0x3f803f80")
            for i in range(8):
                A("v_cndmask_b32 v%d, v%d, v11, vcc" % (acc + i, acc + i))
            A("buffer_store_dwordx4 %s, v7, %s, s61 offen offset:1024 sc1" % (vr(acc, 4), sr(WS, 4)))
            A("buffer_store_dwordx4 %s, v7, %s, s61 offen offset:2048 sc1" % (vr(acc + 4, 4), sr(WS, 4)))
            A("s_add_u32 s%d, s%d, %d" % (sX[4], sX[4], F_V))
        if role in "KV":
            A("v_cmp_o_f32 vcc, v10, v10")
            A("v_mov_b32 v11, 0x7f800000")
            A("v_cndmask_b32 v10, v11, v10, vcc")
            self.wave_max(10, 11)
            A("v_readlane_b32 s%d, v10, 63" % sX[5])
            A("s_or_b32 s%d, s%d, 1" % (sX[5], sX[5]))
        A("s_branch L_zphase")

    def gelu(self, acc, T, stats):
        A = self.A
        A("v_mov_b32 v4, 0x%x" % f2u(GB))
        A("v_mov_b32 v5, 0x%x" % f2u(GA))
        P = range(8)
        for i in P: A("v_pk_mul_f32 %s, %s, %s" % (vr(T + 2 * i, 2), vr(acc + 2 * i, 2), vr(acc + 2 * i, 2)))
        for i in P: A("v_pk_fma_f32 %s, %s, v[4:5], v[4:5] op_sel:[0,0,1] op_sel_hi:[1,0,1]" % (vr(T + 2 * i, 2), vr(T + 2 * i, 2)))
        for i in P: A("v_pk_mul_f32 %s, %s, %s" % (vr(T + 2 * i, 2), vr(T + 2 * i, 2), vr(acc + 2 * i, 2)))
        for i in range(16): A("v_exp_f32 v%d, v%d" % (T + i, T + i))
        for i in P: A("v_pk_add_f32 %s, %s, 1.0 op_sel_hi:[1,0]" % (vr(T + 2 * i, 2), vr(T + 2 * i, 2)))
        for i in range(16): A("v_rcp_f32 v%d, v%d" % (T + i, T + i))
        for i in P: A("v_pk_mul_f32 %s, %s, %s" % (vr(acc + 2 * i, 2), vr(acc + 2 * i, 2), vr(T + 2 * i, 2)))
        if stats:
            A("v_pk_add_f32 v[8:9], %s, %s" % (vr(acc, 2), vr(acc + 2, 2)))
            A("v_pk_mul_f32 v[10:11], %s, %s" % (vr(acc, 2), vr(acc, 2)))
            for i in range(1, 8):
                if i >= 2: A("v_pk_add_f32 v[8:9], v[8:9], %s" % vr(acc + 2 * i, 2))
                A("v_pk_fma_f32 v[10:11], %s, %s, v[10:11]" % (vr(acc + 2 * i, 2), vr(acc + 2 * i, 2)))
            A("v_add_f32 v8, v8, v9")
            A("v_add_f32 v9, v10, v11")
            A("v_mov_b32 v10, v8")
            A("v_mov_b32 v11, v9")
            A("v_permlane32_swap_b32 v8, v10")
            A("v_permlane32_swap_b32 v9, v11")
            A("v_add_f32 v8, v8, v10")
            A("v_add_f32 v9, v9, v11")

    def zphase(self):
        A = self.A
        A("L_zphase:")
        self.stamp(3)
        A.vm = 0; self.zid = {}
        for c in range(8):
            A.vm += 2; self.zid[c] = A.vm
        for s in range(1, 21):
            if s < 20:
                A.wait_vm(self.zid[s])
            A("s_waitcnt lgkmcnt(0)")
            A("s_barrier")
            if s + 7 < 20:
                self.z_dma(s + 7)
            if s == 5:
                L = A.label("Lz")
                A("s_and_b32 s60, s%d, 3" % sW)
                A("s_cmp_eq_u32 s60, 3")
                A("s_cselect_b32 s60, s%d, 0" % sKVD)
                A("s_cmp_eq_u32 s%d, s%d" % (sW, sLDR))
                A("s_cselect_b32 s60, 0, s60")
                A("s_cmp_eq_u32 s60, 0")
                A("s_cbranch_scc1 " + L)
                A("s_waitcnt vmcnt(10)")
                A("v_mov_b32 v9, s%d" % sX[5])
                save = A.vm
                self.flag_store(8, 9, sX[4])
                A.vm = save
                A(L + ":")
            if s == 11:
                L, L2 = A.label("Lz"), A.label("Lz")
                A("s_cmp_eq_u32 s%d, 0" % sW)
                A("s_cbranch_scc0 " + L)
                A("v_lshlrev_b32 v12, 3, v1")
                A("v_add_u32 v13, 0x%x, v12" % ST)
                A("ds_read_b64 v[8:9], v13")
                A("ds_read_b64 v[10:11], v13 offset:512")
                A("ds_read_b64 v[14:15], v13 offset:1024")
                A("ds_read_b64 v[4:5], v13 offset:1536")
                A("s_lshl_b32 s60, s%d, 3" % sG)
                A("s_add_u32 s60, s60, s%d" % sJ)
                A("s_lshl_b32 s60, s60, 9")
                A("s_add_u32 s60, s60, 0x%x" % STATS)
                A("s_waitcnt lgkmcnt(0)")
                A("v_pk_add_f32 v[8:9], v[8:9], v[10:11]")
                A("v_pk_add_f32 v[8:9], v[8:9], v[14:15]")
                A("s_cmp_eq_u32 s%d, 3" % sNU)
                A("s_cbranch_scc1 " + L2)
                A("v_pk_add_f32 v[8:9], v[8:9], v[4:5]")
                A(L2 + ":")
                A("buffer_store_dwordx2 v[8:9], v12, %s, s60 offen sc1" % sr(WS, 4))
                A(L + ":")
            if s == 15:
                L = A.label("Lz")
                A("s_cmp_eq_u32 s%d, 0" % sW)
                A("s_cbranch_scc0 " + L)
                A("s_waitcnt vmcnt(2)")
                A("s_lshl_b32 s60, s%d, 7" % sG)
                A("s_lshl_b32 s61, s%d, 2" % sJ)
                A("s_add_u32 s60, s60, s61")
                A("s_add_u32 s60, s60, %d" % F_H2)
                A("v_mov_b32 v9, 1")
                save = A.vm
                self.flag_store(8, 9, 60)
                A.vm = save
                A(L + ":")
            if s < 20:
                self.z_reads(s)
            self.mfmas(self.ACC if s <= 10 else self.ACC1, (s - 1) % 10, (s - 1) % 2)
            if s == 10:
                self.stamp(4)
                self.gelu(self.ACC, self.ACC1, True)
                for i in range(8):
                    A("v_cvt_pk_bf16_f32 v%d, v%d, v%d" % (self.Z2P + i, self.ACC + 2 * i, self.ACC + 2 * i + 1))
                A("s_and_b32 s60, s%d, 3" % sW)
                A("s_lshl_b32 s60, s60, 9")
                A("s_lshr_b32 s61, s%d, 2" % sW)
                A("s_lshl_b32 s61, s61, 8")
                A("s_add_u32 s60, s60, s61")
                A("s_add_u32 s60, s60, %d" % ST)
                A("v_lshl_add_u32 v10, v2, 3, s60")
                A("s_mov_b32 exec_hi, 0")
                A("ds_write_b64 v10, v[8:9]")
                A("s_mov_b64 exec, -1")
        self.stamp(5)
        self.gelu(self.ACC1, self.ACC, False)
        for i in range(8):
            A("v_cvt_pk_bf16_f32 v%d, v%d, v%d" % (self.ACC + i, self.ACC1 + 2 * i, self.ACC1 + 2 * i + 1))
        A("s_cmp_ge_u32 s%d, 4" % sW)
        A("s_cbranch_scc1 L_roleB")
        A("s_lshl_b32 s60, s%d, 12" % sW)
        A("s_add_u32 s60, s60, %d" % PX)
        A("v_add_u32 v8, s60, v7")
        A("ds_write_b128 v8, %s" % vr(self.Z2P, 4))
        A("ds_write_b128 v8, %s offset:1024" % vr(self.Z2P + 4, 4))
        A("ds_write_b128 v8, %s offset:2048" % vr(self.ACC, 4))
        A("ds_write_b128 v8, %s offset:3072" % vr(self.ACC + 4, 4))
        A("s_waitcnt lgkmcnt(0)")
        A("s_barrier")

    O, Q, KV, S, P = 128, 80, 52, 20, 12

    def kv_regs(self, b):
        base = self.KV + 14 * b
        return base, base + 12, base + 4

    def load_k(self, b, sreg):
        k1, k2, _ = self.kv_regs(b)
        self.A("buffer_load_dwordx4 %s, v7, %s, s%d offen sc1" % (vr(k1, 4), sr(WS, 4), sreg))
        self.A("buffer_load_dwordx2 %s, v5, %s, s%d offen offset:3072 sc1" % (vr(k2, 2), sr(WS, 4), sreg))

    def load_v(self, b, sreg):
        _, _, v = self.kv_regs(b)
        self.A("buffer_load_dwordx4 %s, v7, %s, s%d offen offset:1024 sc1" % (vr(v, 4), sr(WS, 4), sreg))
        self.A("buffer_load_dwordx4 %s, v7, %s, s%d offen offset:2048 sc1" % (vr(v + 4, 4), sr(WS, 4), sreg))

    def qk(self, which, sbuf, kb, qt):
        k1, k2, _ = self.kv_regs(kb)
        s = vr(self.S + 16 * sbuf, 16); q = self.Q + 6 * qt
        if which == 0:
            return "v_mfma_f32_32x32x16_bf16 %s, %s, %s, 0" % (s, vr(k1, 4), vr(q, 4))
        return "v_mfma_f32_32x32x8_bf16 %s, %s, %s, %s" % (s, vr(k2, 2), vr(q + 4, 2), s)

    def pv(self, which, vb, qt):
        _, _, v = self.kv_regs(vb)
        o = vr(self.O + 16 * qt, 16)
        return "v_mfma_f32_32x32x16_bf16 %s, %s, %s, %s" % (o, vr(v + 4 * which, 4), vr(self.P + 4 * which, 4), o)

    def roleA(self):
        A = self.A
        self.stamp(6)
        A("v_mul_u32_u24 v4, %d, v2" % QP)
        A("v_add_u32 v4, 0x%x, v4" % QS)
        A("v_lshl_add_u32 v6, v3, 3, v4")
        for lh in range(4):
            A("s_add_u32 s60, s%d, %d" % (sW, lh))
            A("s_and_b32 s60, s60, 3")
            A("s_mul_i32 s60, s60, 40")
            A("v_add_u32 v8, s60, v6")
            A("v_add_u32 v9, s60, v4")
            for tt in range(2):
                q = self.Q + 6 * (2 * lh + tt)
                A("ds_read_b64 %s, v8 offset:%d" % (vr(q, 2), tt * 32 * QP))
                A("ds_read_b64 %s, v8 offset:%d" % (vr(q + 2, 2), tt * 32 * QP + 16))
                A("ds_read_b64 %s, v9 offset:%d" % (vr(q + 4, 2), tt * 32 * QP + 32))
        A("v_lshlrev_b32 v4, 2, v1")
        A("s_mov_b64 s[4:5], -1")
        self.poll(4, "0", 10)
        A("s_mov_b32 s60, %d" % F_V)
        self.poll(4, "s60", 11)
        self.stamp(7)
        A("v_lshlrev_b32 v5, 3, v2")
        sK, sV = sX[0], sX[1]
        A("s_lshl_b32 s%d, s%d, 16" % (sK, sW))
        A("s_add_u32 s%d, s%d, 0x%x" % (sK, sK, KVB))
        A("s_add_u32 s60, s%d, 4096" % sK)
        self.load_k(0, sK); self.load_v(0, sK); self.load_k(1, 60)
        A("s_add_u32 s%d, s%d, 4096" % (sV, sK))
        A("s_add_u32 s%d, s%d, 8192" % (sK, sK))
        self.wave_max(10, 8)
        self.wave_max(11, 8)
        A("v_readlane_b32 s62, v10, 63")
        A("v_readlane_b32 s63, v11, 63")
        A("s_waitcnt lgkmcnt(0)")
        A("v_mov_b32 v8, 0x%x" % (CNTS + 4))
        A("v_mov_b32 v9, 1")
        A("s_mov_b64 exec, 1")
        A("ds_add_u32 v8, v9")
        A("s_mov_b64 exec, -1")
        A("v_cmp_eq_u32 vcc, 0, v3")
        for qt in range(8):
            q = self.Q + 6 * qt
            A("v_cndmask_b32 v%d, 0, v%d, vcc" % (q + 4, q + 4))
            A("v_cndmask_b32 v%d, 0, v%d, vcc" % (q + 5, q + 5))
        T = self.S
        for qt in range(8):
            A("v_mov_b32 v%d, 0" % (T + qt))
        for i in range(6):
            for qt in range(8):
                q = self.Q + 6 * qt
                A("v_dot2_f32_bf16 v%d, v%d, v%d, v%d" % (T + qt, q + i, q + i, T + qt))
        for qt in range(8):
            A("v_mov_b32 v%d, v%d" % (T + 8 + qt, T + qt))
        for qt in range(8):
            A("v_permlane32_swap_b32 v%d, v%d" % (T + qt, T + 8 + qt))
        for qt in range(8):
            A("v_add_f32 v%d, v%d, v%d" % (T + qt, T + qt, T + 8 + qt))
        A("s_mov_b64 s[6:7], 0")
        A("v_mov_b32 v8, 0x%x" % f2u(3600.0))
        for qt in range(8):
            A("v_mul_f32 v%d, s62, v%d" % (T + qt, T + qt))
            A("v_cmp_nle_f32 vcc, v%d, v8" % (T + qt))
            A("s_or_b64 s[6:7], s[6:7], vcc")
        A("s_cmp_gt_u32 s63, 0x%x" % f2u(2.0 ** 40))
        A("s_cselect_b32 s60, 1, 0")
        A("s_or_b32 s6, s6, s60")
        A("s_mul_i32 s60, s%d, 20" % sJ)
        A("s_mul_i32 s61, s%d, 5" % sW)
        A("s_add_u32 s60, s60, s61")
        A("v_lshrrev_b32 v11, 4, v2")
        A("v_lshlrev_b32 v11, 10, v11")
        A("v_and_b32 v4, 15, v2")
        A("v_lshl_add_u32 v11, v4, 4, v11")
        for n, add in enumerate((0, 2, 4)):
            d = 8 + n
            if n < 2:
                A("v_add_u32 v4, s60, v3")
                if add: A("v_add_u32 v4, %d, v4" % add)
            else:
                A("s_add_u32 s61, s60, 4")
                A("v_mov_b32 v4, s61")
            A("v_lshrrev_b32 v6, 3, v4")
            A("v_lshl_add_u32 v%d, v6, 12, v11" % d)
            A("v_bfe_u32 v6, v4, 2, 1")
            A("v_lshl_add_u32 v%d, v6, 9, v%d" % (d, d))
            A("v_and_b32 v6, 1, v4")
            A("v_lshl_add_u32 v%d, v6, 8, v%d" % (d, d))
            A("v_bfe_u32 v6, v4, 1, 1")
            A("v_lshl_add_u32 v%d, v6, 3, v%d" % (d, d))
        for i in range(128):
            A("v_mov_b32 v%d, 0" % (self.O + i))
        for i in range(8):
            A("v_mov_b32 v%d, 0" % (self.P + i))
        for i in range(8):
            A("v_mov_b32 v%d, 0" % (self.kv_regs(1)[2] + i))
        if self.force_fb:
            A("s_branch L_fallback")
        A("s_cmp_lg_u64 s[6:7], 0")
        A("s_cbranch_scc1 L_fallback")
        A("s_waitcnt vmcnt(0)")
        A(self.qk(0, 0, 0, 0)); A(self.qk(1, 0, 0, 0))
        A("s_mov_b32 s%d, 0" % sX[2])
        A("s_nop 7")
        self.stamp(8)
        A(".p2align 3")
        A("L_att:")
        for half in range(2):
            for qt in range(8):
                x = self.S + 16 * (qt % 2)
                nb = half if qt < 7 else 1 - half
                e = ["v_exp_f32 v%d, v%d" % (x + i, x + i) for i in range(16)]
                c = ["v_cvt_pk_bf16_f32 v%d, v%d, v%d" % (self.P + i, x + 2 * i, x + 2 * i + 1) for i in range(8)]
                if qt == 7: A("s_waitcnt vmcnt(2)")
                A(self.qk(0, (qt + 1) % 2, nb, (qt + 1) % 8))
                if qt == 7:
                    self.load_k(half, sK)
                    A("s_add_u32 s%d, s%d, 4096" % (sK, sK))
                for i in e[0:3]: A(i)
                A(self.qk(1, (qt + 1) % 2, nb, (qt + 1) % 8))
                for i in e[3:8]: A(i)
                for i in c[0:4]: A(i)
                A(self.pv(1, half if qt > 0 else 1 - half, (qt - 1) % 8))
                if qt == 0:
                    self.load_v(1 - half, sV)
                    A("s_add_u32 s%d, s%d, 4096" % (sV, sV))
                for i in e[8:11]: A(i)
                if qt == 0: A("s_waitcnt vmcnt(4)")
                A(self.pv(0, half, qt))
                for i in e[11:16]: A(i)
                for i in c[4:8]: A(i)
        A("s_add_u32 s%d, s%d, 1" % (sX[2], sX[2]))
        A("s_cmp_lt_u32 s%d, 8" % sX[2])
        A("s_cbranch_scc1 L_att")
        A(self.pv(1, 1, 7))
        self.stamp(9)
        A("s_barrier")
        A("L_attdone:")
        A("s_mul_i32 s60, s%d, 18432" % sW)
        A("s_add_u32 s60, s60, %d" % EXCH)
        A("v_add_u32 v4, s60, v7")
        for lh in range(1, 4):
            for tt in range(2):
                for k in range(3):
                    A("ds_write_b128 v4, %s offset:%d" % (vr(self.O + 16 * (2 * lh + tt) + 4 * k, 4), ((lh - 1) * 6 + tt * 3 + k) * 1024))
        A("s_waitcnt lgkmcnt(0)")
        A("s_barrier")
        A("s_waitcnt vmcnt(0)")
        R = 20
        for d in range(1, 4):
            A("s_add_u32 s60, s%d, %d" % (sW, 4 - d))
            A("s_and_b32 s60, s60, 3")
            A("s_mul_i32 s60, s60, 18432")
            A("s_add_u32 s60, s60, %d" % (EXCH + (d - 1) * 6144))
            A("v_add_u32 v4, s60, v7")
            for k in range(6):
                A("ds_read_b128 %s, v4 offset:%d" % (vr(R + 24 * (d - 1) + 4 * k, 4), k * 1024))
        A("s_waitcnt lgkmcnt(0)")
        A("s_barrier")
        for tt in range(2):
            for i in range(6):
                o = vr(self.O + 16 * tt + 2 * i, 2)
                A("v_pk_add_f32 %s, %s, %s" % (vr(R + 12 * tt + 2 * i, 2), vr(R + 12 * tt + 2 * i, 2), vr(R + 24 + 12 * tt + 2 * i, 2)))
                A("v_pk_add_f32 %s, %s, %s" % (o, o, vr(R + 48 + 12 * tt + 2 * i, 2)))
                A("v_pk_add_f32 %s, %s, %s" % (o, o, vr(R + 12 * tt + 2 * i, 2)))
        A("s_mul_i32 s60, s%d, %d" % (sG, 20 * 4096))
        A("s_add_u32 s60, s60, 0x%x" % OB)
        for tt in range(2):
            o = self.O + 16 * tt
            A("v_mov_b32 v12, v%d" % (o + 8))
            A("v_mov_b32 v14, v%d" % (o + 8))
            A("v_permlane32_swap_b32 v12, v14")
            A("v_rcp_f32 v14, v14")
            for i in range(6):
                A("v_pk_mul_f32 %s, %s, v[14:15] op_sel_hi:[1,0]" % (vr(o + 2 * i, 2), vr(o + 2 * i, 2)))
            for i in range(6):
                A("v_cvt_pk_bf16_f32 v%d, v%d, v%d" % (o + i, o + 2 * i, o + 2 * i + 1))
            A("buffer_store_dwordx2 %s, v8, %s, s60 offen offset:%d sc1" % (vr(o, 2), sr(WS, 4), 2048 * tt))
            A("buffer_store_dwordx2 %s, v9, %s, s60 offen offset:%d sc1" % (vr(o + 2, 2), sr(WS, 4), 2048 * tt))
            A("s_mov_b32 exec_hi, 0")
            A("buffer_store_dwordx2 %s, v10, %s, s60 offen offset:%d sc1" % (vr(o + 4, 2), sr(WS, 4), 2048 * tt))
            A("s_mov_b64 exec, -1")
        A("s_lshl_b32 s60, s%d, 7" % sG)
        A("s_lshl_b32 s61, s%d, 4" % sJ)
        A("s_add_u32 s60, s60, s61")
        A("s_lshl_b32 s61, s%d, 2" % sW)
        A("s_add_u32 s60, s60, s61")
        A("s_add_u32 s60, s60, %d" % F_H5)
        A("v_mov_b32 v13, 1")
        A("s_waitcnt vmcnt(0)")
        self.flag_store(12, 13, 60)
        self.stamp(10)
        A("s_branch L_tail")

    def fallback(self):
        A = self.A
        sK, sV = sX[0], sX[1]
        M = self.S + 16
        T = M + 8
        x = self.S
        A("L_fallback:")
        for qt in range(8):
            A("v_mov_b32 v%d, 0x%x" % (M + qt, f2u(-3.0e38)))
        A("s_sub_u32 s%d, s%d, 8192" % (sK, sK))
        A("s_mov_b32 s%d, 0" % sX[2])
        A("L_fb:")
        self.load_k(0, sK); self.load_v(0, sK)
        A("s_add_u32 s%d, s%d, 4096" % (sK, sK))
        A("s_waitcnt vmcnt(0)")
        for qt in range(8):
            A(self.qk(0, 0, 0, qt)); A(self.qk(1, 0, 0, qt))
            A("v_max3_f32 v%d, v%d, v%d, v%d" % (T, x, x + 1, M + qt))
            for i in range(1, 8):
                A("v_max3_f32 v%d, v%d, v%d, v%d" % (T, x + 2 * i, x + 2 * i + 1, T))
            A("v_mov_b32 v%d, v%d" % (T + 1, T))
            A("v_permlane32_swap_b32 v%d, v%d" % (T, T + 1))
            A("v_max_f32 v%d, v%d, v%d" % (T, T, T + 1))
            A("v_sub_f32 v%d, v%d, v%d" % (T + 2, M + qt, T))
            A("v_exp_f32 v%d, v%d" % (T + 2, T + 2))
            A("v_mov_b32 v%d, v%d" % (M + qt, T))
            for i in range(16):
                A("v_sub_f32 v%d, v%d, v%d" % (x + i, x + i, T))
            for i in range(16):
                A("v_exp_f32 v%d, v%d" % (x + i, x + i))
            for i in range(12):
                A("v_mul_f32 v%d, v%d, v%d" % (self.O + 16 * qt + i, self.O + 16 * qt + i, T + 2))
            for i in range(8):
                A("v_cvt_pk_bf16_f32 v%d, v%d, v%d" % (self.P + i, x + 2 * i, x + 2 * i + 1))
            A(self.pv(0, 0, qt)); A(self.pv(1, 0, qt))
        A("s_add_u32 s%d, s%d, 1" % (sX[2], sX[2]))
        A("s_cmp_lt_u32 s%d, 16" % sX[2])
        A("s_cbranch_scc1 L_fb")
        A("v_lshlrev_b32 v4, 2, v2")
        for lh in range(4):
            A("s_add_u32 s60, s%d, %d" % (sW, lh))
            A("s_and_b32 s60, s60, 3")
            A("s_lshl_b32 s60, s60, 8")
            A("s_add_u32 s%d, s60, %d" % (sX[4 + lh], MAREA))
            A("s_lshl_b32 s61, s%d, 10" % sW)
            A("s_add_u32 s60, s61, s%d" % sX[4 + lh])
            A("v_add_u32 v6, s60, v4")
            A("ds_write_b32 v6, v%d" % (M + 2 * lh))
            A("ds_write_b32 v6, v%d offset:128" % (M + 2 * lh + 1))
        A("s_waitcnt lgkmcnt(0)")
        A("s_barrier")
        for lh in range(4):
            A("v_add_u32 v6, s%d, v4" % sX[4 + lh])
            for tt in range(2):
                for w in range(4):
                    A("ds_read_b32 v%d, v6 offset:%d" % (x + w, 1024 * w + 128 * tt))
                A("s_waitcnt lgkmcnt(0)")
                qt = 2 * lh + tt
                A("v_max3_f32 v%d, v%d, v%d, v%d" % (x, x, x + 1, x + 2))
                A("v_max_f32 v%d, v%d, v%d" % (x, x, x + 3))
                A("v_sub_f32 v%d, v%d, v%d" % (x, M + qt, x))
                A("v_exp_f32 v%d, v%d" % (x, x))
                for i in range(12):
                    A("v_mul_f32 v%d, v%d, v%d" % (self.O + 16 * qt + i, self.O + 16 * qt + i, x))
        A("s_branch L_attdone")

    def roleB(self):
        A = self.A
        A("L_roleB:")
        Z1P, ZN = 32, 48
        sB = sX[11]
        for i in range(8):
            A("v_mov_b32 v%d, v%d" % (Z1P + 8 + i, self.ACC + i))
            A("v_mov_b32 v%d, v%d" % (ZN + 8 + i, self.Z2P + i))
        A("s_sub_u32 s%d, s%d, 4" % (sB, sW))
        A("s_barrier")
        self.stamp(6)
        A("s_lshl_b32 s60, s%d, 12" % sB)
        A("s_add_u32 s60, s60, %d" % PX)
        A("v_add_u32 v8, s60, v7")
        A("ds_read_b128 %s, v8" % vr(ZN, 4))
        A("ds_read_b128 %s, v8 offset:1024" % vr(ZN + 4, 4))
        A("ds_read_b128 %s, v8 offset:2048" % vr(Z1P, 4))
        A("ds_read_b128 %s, v8 offset:3072" % vr(Z1P + 4, 4))
        A("v_lshlrev_b32 v4, 2, v2")
        A("s_lshl_b32 s60, s%d, 7" % sG)
        A("s_add_u32 s60, s60, %d" % F_H2)
        A("s_mov_b64 s[4:5], 0xff")
        self.poll(4, "s60", 8)
        A("v_lshlrev_b32 v5, 3, v1")
        A("s_lshl_b32 s60, s%d, 12" % sG)
        A("s_add_u32 s60, s60, 0x%x" % STATS)
        for m in range(8):
            A("buffer_load_dwordx2 %s, v5, %s, s60 offen offset:%d sc1" % (vr(64 + 2 * m, 2), sr(WS, 4), 512 * m))
        A("v_lshlrev_b32 v6, 1, v2")
        A("s_lshl_b32 s60, s%d, 7" % sG)
        A("buffer_load_ushort v30, v6, %s, s60 offen" % sr(BSP, 4))
        A("buffer_load_ushort v31, v6, %s, s60 offen offset:64" % sr(BSP, 4))
        A("s_waitcnt vmcnt(0)")
        for m in (0, 2, 4, 6):
            A("v_pk_add_f32 %s, %s, %s" % (vr(64 + 2 * m, 2), vr(64 + 2 * m, 2), vr(66 + 2 * m, 2)))
        A("v_pk_add_f32 v[64:65], v[64:65], v[68:69]")
        A("v_pk_add_f32 v[72:73], v[72:73], v[76:77]")
        A("v_pk_add_f32 v[64:65], v[64:65], v[72:73]")
        A("v_mul_f32 v64, 0x%x, v64" % f2u(1.0 / 864))
        A("v_mul_f32 v65, 0x%x, v65" % f2u(1.0 / 864))
        A("v_fma_f32 v65, -v64, v64, v65")
        A("v_max_f32 v65, 0, v65")
        A("v_add_f32 v65, 0x%x, v65" % f2u(1e-5))
        A("v_rsq_f32 v66, v65")
        A("v_lshlrev_b32 v30, 16, v30")
        A("v_mul_f32_e64 v67, -v64, v66")
        A("v_lshlrev_b32 v31, 16, v31")
        A("v_mov_b32 v68, v66")
        A("v_mov_b32 v69, v67")
        A("v_permlane32_swap_b32 v66, v68")
        A("v_permlane32_swap_b32 v67, v69")
        A("s_mov_b32 s61, 0xffff0000")
        A("s_lshl_b32 s60, s%d, 12" % sB)
        A("s_add_u32 s60, s60, %d" % TRS)
        A("v_lshlrev_b32 v8, 6, v2")
        A("v_lshl_add_u32 v8, v3, 3, v8")
        A("v_add_u32 v8, s60, v8")
        A("s_waitcnt lgkmcnt(0)")
        for tt in range(2):
            c = vr(66 + 2 * tt, 2)
            for i in range(8):
                A("v_lshlrev_b32 v%d, 16, v%d" % (72 + 2 * i, ZN + 8 * tt + i))
                A("v_and_b32 v%d, s61, v%d" % (73 + 2 * i, ZN + 8 * tt + i))
            for i in range(8):
                A("v_pk_fma_f32 %s, %s, %s, %s op_sel:[0,0,1] op_sel_hi:[1,0,1]" % (vr(72 + 2 * i, 2), vr(72 + 2 * i, 2), c, c))
            for i in range(8):
                A("v_cvt_pk_bf16_f32 v%d, v%d, v%d" % (ZN + 8 * tt + i, 72 + 2 * i, 73 + 2 * i))
            for i in range(4):
                A("ds_write_b64 v8, %s offset:%d" % (vr(ZN + 8 * tt + 2 * i, 2), 2048 * tt + 16 * i))
        self.lane_tr(9, 10, 11)
        A("v_lshrrev_b32 v12, 1, v9")
        A("v_lshl_add_u32 v12, v12, 3, v10")
        A("v_lshlrev_b32 v12, 6, v12")
        A("v_and_b32 v13, 1, v9")
        A("v_lshl_add_u32 v12, v13, 5, v12")
        A("v_lshl_add_u32 v12, v11, 3, v12")
        A("v_add_u32 v12, s60, v12")
        A("s_waitcnt lgkmcnt(0)")
        for ks in range(4):
            for rd in range(2):
                A("ds_read_b64_tr_b16 %s, v12 offset:%d" % (vr(64 + 4 * ks + 2 * rd, 2), 1024 * ks + 256 * rd))
        A("v_lshrrev_b32 v15, 1, v9")
        A("v_lshlrev_b32 v15, 4, v15")
        A("v_lshl_add_u32 v15, v13, 2, v15")
        A("v_add_u32 v15, v15, v10")
        A("v_mul_u32_u24 v15, 160, v15")
        A("v_lshl_add_u32 v15, v11, 3, v15")
        A("v_lshrrev_b32 v8, 3, v1")
        A("v_lshlrev_b32 v8, 12, v8")
        A("v_lshrrev_b32 v9, 4, v1")
        A("v_and_b32 v10, 7, v1")
        A("v_xor_b32 v9, v9, v10")
        A("v_lshl_add_u32 v16, v9, 4, v8")
        A("v_xor_b32 v17, 64, v16")
        A("s_mul_i32 s%d, s%d, 24576" % (sX[0], sB))
        A("v_lshrrev_b32 v8, 3, v2")
        A("v_lshlrev_b32 v8, 10, v8")
        A("v_and_b32 v9, 7, v2")
        A("v_lshl_add_u32 v8, v9, 7, v8")
        A("v_bfe_u32 v9, v2, 1, 3")
        A("v_xor_b32 v9, v9, v3")
        A("v_lshl_add_u32 v8, v9, 4, v8")
        A("v_add_u32 v18, s%d, v8" % sX[0])
        for k in range(1, 4):
            A("v_xor_b32 v%d, %d, v18" % (18 + k, 32 * k))
        A("s_lshl_b32 s%d, s%d, 18" % (sX[1], sG))
        A("s_lshl_b32 s60, s%d, 10" % sB)
        A("s_add_u32 s%d, s%d, s60" % (sX[1], sX[1]))
        A("s_sub_u32 s63, s%d, 1" % sNU)
        for lu in range(4):
            A("s_add_u32 s60, s%d, %d" % (sB, lu))
            A("s_and_b32 s60, s60, 3")
            A("s_min_u32 s60, s60, s63")
            A("s_add_u32 s60, s60, s%d" % sU0)
            if lu == 0: A("s_mov_b32 s%d, s60" % sX[6])
            A("s_lshl_b32 s60, s60, 17")
            A("s_lshl_b32 s61, s%d, 15" % sB)
            A("s_add_u32 s60, s60, s61")
            A("s_add_u32 s%d, s60, 0x%x" % (sX[2 + lu], Z2N))
        A("s_lshl_b32 s60, s%d, 17" % sX[6])
        A("s_lshl_b32 s61, s%d, 12" % sG)
        A("s_add_u32 s60, s60, s61")
        A("s_add_u32 s60, s60, 0x%x" % Z2N)
        A("s_waitcnt lgkmcnt(0)")
        Lsk = A.label("Lb")
        A("s_cmp_ge_u32 s%d, s%d" % (sB, sNU))
        A("s_cbranch_scc1 " + Lsk)
        for ks in range(4):
            A("buffer_store_dwordx4 %s, v7, %s, s60 offen offset:%d sc1" % (vr(64 + 4 * ks, 4), sr(WS, 4), 1024 * ks))
        A(Lsk + ":")
        A.vm = 0
        did = {}

        def wsp_dma(st):
            for rg in range(8):
                A("s_add_u32 m0, s%d, %d" % (sX[0], (st % 3) * 8192 + rg * 1024))
                A("s_add_u32 s60, s%d, %d" % (sX[1], rg * 32768 + st * 128))
                did[st] = A.vmem("buffer_load_dwordx4 v%d, %s, s60 offen lds" % (16 + rg % 2, sr(WSP, 4)))
        for st in range(3): wsp_dma(st)
        Lsk = A.label("Lb")
        A("s_cmp_ge_u32 s%d, s%d" % (sB, sNU))
        A("s_cbranch_scc1 " + Lsk)
        A("s_waitcnt vmcnt(24)")
        A("s_lshl_b32 s60, s%d, 2" % sJ)
        A("s_lshr_b32 s61, s%d, 3" % sG)
        A("s_add_u32 s60, s60, s61")
        A("s_lshl_b32 s60, s60, 7")
        A("s_and_b32 s61, s%d, 7" % sG)
        A("s_lshl_b32 s61, s61, 4")
        A("s_add_u32 s60, s60, s61")
        A("s_lshl_b32 s61, s%d, 2" % sB)
        A("s_add_u32 s60, s60, s61")
        A("s_add_u32 s60, s60, %d" % F_H3)
        A("v_mov_b32 v9, 1")
        self.flag_store(8, 9, 60)
        A(Lsk + ":")
        self.stamp(7)
        A("s_lshl_b32 s60, s%d, 2" % sJ)
        A("s_add_u32 s60, s60, s%d" % sB)
        A("s_lshl_b32 s60, s60, 7")
        A("s_add_u32 s60, s60, %d" % F_H3)
        A("s_cmp_eq_u32 s%d, 4" % sNU)
        A("s_cselect_b32 s4, -1, 0x77777777")
        A("s_mov_b32 s5, 0")
        self.poll(4, "s60", 8, sleep=4)
        self.stamp(8)
        A.vm = 0
        did = {0: 0, 1: 0, 2: 0}
        zid = {}
        ZB, WF, AC = 64, 48, 128

        def zload(ks):
            for lu in range(4):
                zid[ks] = A.vmem("buffer_load_dwordx4 %s, v7, %s, s%d offen offset:%d sc1" % (
                    vr(ZB + 16 * (ks % 4) + 4 * lu, 4), sr(WS, 4), sX[2 + lu], 1024 * (ks % 4)))
            if ks % 4 == 3:
                for lu in range(4):
                    A("s_add_u32 s%d, s%d, 4096" % (sX[2 + lu], sX[2 + lu]))

        def wread(ks):
            st = ks // 4
            for tt in range(2):
                A("ds_read_b128 %s, v%d offset:%d" % (vr(WF + 8 * (ks % 2) + 4 * tt, 4), 18 + ks % 4, (st % 3) * 8192 + tt * 4096))
        for ks in range(4): zload(ks)
        wread(0)
        for ks in range(32):
            st = ks // 4
            if ks + 1 < 32:
                if (ks + 1) % 4 == 0 and did[st + 1] > 0:
                    A.wait_vm(did[st + 1])
                wread(ks + 1)
                A("s_waitcnt lgkmcnt(2)")
            else:
                A("s_waitcnt lgkmcnt(0)")
            if ks % 4 == 3 and st + 3 < 8:
                wsp_dma(st + 3)
            A.wait_vm(zid[ks])
            for lu in range(4):
                for tt in range(2):
                    acc = vr(AC + 16 * (2 * lu + tt), 16)
                    A("v_mfma_f32_32x32x16_bf16 %s, %s, %s, %s" % (acc, vr(ZB + 16 * (ks % 4) + 4 * lu, 4),
                      vr(WF + 8 * (ks % 2) + 4 * tt, 4), "0" if ks == 0 else acc))
            if ks + 4 < 32: zload(ks + 4)
        self.stamp(9)
        A("v_add_u32 v8, s%d, v7" % sX[0])
        for lu in range(1, 4):
            for k in range(8):
                A("ds_write_b128 v8, %s offset:%d" % (vr(AC + 32 * lu + 4 * k, 4), (lu - 1) * 8192 + k * 1024))
        self.bsync(0, 8, 9)
        for d in range(1, 4):
            A("s_add_u32 s60, s%d, %d" % (sB, 4 - d))
            A("s_and_b32 s60, s60, 3")
            A("s_mul_i32 s60, s60, 24576")
            A("s_add_u32 s60, s60, %d" % ((d - 1) * 8192))
            A("v_add_u32 v8, s60, v7")
            for k in range(8):
                A("ds_read_b128 %s, v8 offset:%d" % (vr(AC + 32 * d + 4 * k, 4), k * 1024))
        for n in range(5):
            self.addr160(48 + n, n, False, 8, 9)
        A("s_mov_b32 s61, 0xffff0000")
        A("s_waitcnt lgkmcnt(0)")
        for i in range(16):
            A("v_pk_add_f32 %s, %s, %s" % (vr(AC + 2 * i, 2), vr(AC + 2 * i, 2), vr(AC + 32 + 2 * i, 2)))
            A("v_pk_add_f32 %s, %s, %s" % (vr(AC + 64 + 2 * i, 2), vr(AC + 64 + 2 * i, 2), vr(AC + 96 + 2 * i, 2)))
        for i in range(16):
            A("v_pk_add_f32 %s, %s, %s" % (vr(AC + 2 * i, 2), vr(AC + 2 * i, 2), vr(AC + 64 + 2 * i, 2)))
        for i in range(16):
            A("v_pk_add_f32 %s, %s, v[30:31] op_sel:[0,%d] op_sel_hi:[1,%d]" % (vr(AC + 2 * i, 2), vr(AC + 2 * i, 2), i // 8, i // 8))
            A("v_lshlrev_b32 v%d, 16, v%d" % (64 + 2 * i, Z1P + i))
            A("v_and_b32 v%d, s61, v%d" % (65 + 2 * i, Z1P + i))
        for i in range(16):
            A("v_pk_mul_f32 %s, %s, %s" % (vr(AC + 2 * i, 2), vr(AC + 2 * i, 2), vr(64 + 2 * i, 2)))
        for i in range(16):
            A("v_cvt_pk_bf16_f32 v%d, v%d, v%d" % (96 + i, AC + 2 * i, AC + 2 * i + 1))
        A("v_lshrrev_b32 v8, 4, v2")
        A("v_lshlrev_b32 v8, 10, v8")
        A("v_and_b32 v9, 15, v2")
        A("v_lshl_add_u32 v8, v9, 4, v8")
        A("v_lshl_add_u32 v8, v3, 8, v8")
        A("s_mul_i32 s%d, s%d, 27" % (sX[1], sG))
        A("s_add_u32 s60, s%d, s%d" % (sX[1], sX[6]))
        A("s_lshl_b32 s60, s60, 12")
        A("s_add_u32 s60, s60, 0x%x" % UB)
        Lsk = A.label("Lb")
        A("s_cmp_ge_u32 s%d, s%d" % (sB, sNU))
        A("s_cbranch_scc1 " + Lsk)
        for tt in range(2):
            for ch in range(2):
                A("buffer_store_dwordx4 %s, v8, %s, s60 offen offset:%d sc1" % (vr(96 + 8 * tt + 4 * ch, 4), sr(WS, 4), 2048 * tt + 512 * ch))
        A(Lsk + ":")
        self.bsync(1, 10, 11, n=8)
        A("s_mul_i32 s%d, s%d, 160" % (sX[7], sJ))
        A("s_mul_i32 s60, s%d, 40960" % sB)
        A("s_add_u32 s%d, s%d, s60" % (sX[8], sX[7]))
        A("s_mul_i32 s%d, s%d, 5120" % (sX[9], sB))

        def wdma(srd, i):
            for n in range(5):
                A("s_add_u32 m0, s%d, %d" % (sX[9], i * 20480 + n * 1024))
                A("s_add_u32 s60, s%d, %d" % (sX[8], i * 163840))
                A("buffer_load_dwordx4 v%d, %s, s60 offen lds" % (48 + n, sr(srd, 4)))
        for i in range(6): wdma(WOUT, i)
        Lsk = A.label("Lb")
        A("s_cmp_eq_u32 s%d, 3" % sB)
        A("s_cbranch_scc1 " + Lsk)
        wdma(WOUT, 6)
        A(Lsk + ":")
        Lsk = A.label("Lb")
        A("s_cmp_ge_u32 s%d, s%d" % (sB, sNU))
        A("s_cbranch_scc1 " + Lsk)
        A("s_waitcnt vmcnt(30)")
        A("s_lshl_b32 s60, s%d, 7" % sG)
        A("s_lshl_b32 s61, s%d, 2" % sX[6])
        A("s_add_u32 s60, s60, s61")
        A("s_add_u32 s60, s60, %d" % F_H4)
        A("v_mov_b32 v9, 1")
        self.flag_store(8, 9, 60)
        A(Lsk + ":")
        self.stamp(10)
        A("s_lshl_b32 s60, s%d, 7" % sG)
        A("s_add_u32 s60, s60, %d" % F_H4)
        A("s_mov_b64 s[4:5], 0x07ffffff")
        self.poll(4, "s60", 8, sleep=2)
        UF, GG, WD = 128, 16, 56
        A.vm = 0
        uid = {}
        A("s_lshl_b32 s60, s%d, 12" % sX[1])
        A("s_lshl_b32 s61, s%d, 10" % sB)
        A("s_add_u32 s60, s60, s61")
        A("s_add_u32 s60, s60, 0x%x" % UB)
        for u in range(27):
            uid[u] = A.vmem("buffer_load_dwordx4 %s, v7, %s, s60 offen sc1" % (vr(UF + 4 * u, 4), sr(WS, 4)))
            A("s_add_u32 s60, s60, 4096")
        A("v_and_b32 v46, 15, v1")
        A("v_mul_u32_u24 v46, 1280, v46")
        A("v_lshrrev_b32 v8, 4, v1")
        A("v_lshl_add_u32 v46, v8, 3, v46")
        A("s_lshl_b32 s60, s%d, 2" % sG)
        A("s_add_u32 s60, s60, s%d" % sB)
        A("s_mul_i32 s60, s60, 20480")
        A("s_add_u32 s%d, s60, s%d" % (sX[10], sX[7]))
        for nt in range(5):
            A.vmem("buffer_load_dwordx2 %s, v46, %s, s%d offen offset:%d" % (vr(36 + 2 * nt, 2), sr(X, 4), sX[10], 32 * nt))
        self.bsync(2, 10, 11)
        A("v_mov_b32 v14, v15")

        def wfr(step, base, dst, off):
            for nt in range(5):
                for rd in range(2):
                    A("ds_read_b64_tr_b16 %s, v%d offset:%d" % (vr(dst + 4 * nt + 2 * rd, 2), base, off + rd * 1280 + nt * 32))
        wfr(0, 14, WD, 0)
        for u in range(27):
            if u + 1 < 27:
                if (u + 1) % 12 == 0: A("v_add_u32 v14, 0x%x, v14" % 61440)
                wfr(u + 1, 14, WD + 20 * ((u + 1) % 2), ((u + 1) % 12) * 5120)
                A("s_waitcnt lgkmcnt(10)")
            else:
                A("s_waitcnt lgkmcnt(0)")
            A.wait_vm(uid[u])
            for nt in range(5):
                acc = vr(GG + 4 * nt, 4)
                A("v_mfma_f32_16x16x32_bf16 %s, %s, %s, %s" % (acc, vr(WD + 20 * (u % 2) + 4 * nt, 4), vr(UF + 4 * u, 4), "0" if u == 0 else acc))
        self.bsync(3, 10, 11)
        for i in range(4): wdma(WO, i)
        T = 56
        A("v_mov_b32 v8, 0x%x" % f2u(-LOG2E))
        for i in range(10): A("v_pk_mul_f32 %s, %s, v[8:9] op_sel_hi:[1,0]" % (vr(T + 2 * i, 2), vr(GG + 2 * i, 2)))
        for i in range(20): A("v_exp_f32 v%d, v%d" % (T + i, T + i))
        for i in range(10): A("v_pk_add_f32 %s, %s, 1.0 op_sel_hi:[1,0]" % (vr(T + 2 * i, 2), vr(T + 2 * i, 2)))
        for i in range(20): A("v_rcp_f32 v%d, v%d" % (T + i, T + i))
        for i in range(10): A("v_pk_mul_f32 %s, %s, %s" % (vr(GG + 2 * i, 2), vr(GG + 2 * i, 2), vr(T + 2 * i, 2)))
        self.stamp(11)
        A("s_barrier")
        A("s_barrier")
        A("s_barrier")
        wdma(WO, 4)
        A("s_waitcnt vmcnt(0)")

    def tail(self):
        A = self.A
        A("L_tail:")
        AC, OF, WP = 196, 216, 56
        A("s_barrier")
        self.lane_tr(9, 10, 11)
        A("v_lshrrev_b32 v15, 1, v9")
        A("v_lshlrev_b32 v15, 4, v15")
        A("v_and_b32 v13, 1, v9")
        A("v_lshl_add_u32 v15, v13, 2, v15")
        A("v_add_u32 v15, v15, v10")
        A("v_mul_u32_u24 v15, 160, v15")
        A("v_lshl_add_u32 v15, v11, 3, v15")
        A("s_lshr_b32 s62, s%d, 2" % sW)
        A("s_mul_i32 s60, s62, 51200")
        A("v_add_u32 v15, s60, v15")

        def wfr(s):
            for nt in range(5):
                for rd in range(2):
                    A("ds_read_b64_tr_b16 %s, v15 offset:%d" % (vr(WP + 20 * (s % 7) + 4 * nt + 2 * rd, 2), s * 5120 + rd * 1280 + nt * 32))
        for s in range(7): wfr(s)
        A("v_lshlrev_b32 v4, 2, v2")
        A("s_lshl_b32 s60, s%d, 7" % sG)
        A("s_add_u32 s60, s60, %d" % F_H5)
        A("s_lshl_b32 s61, s62, 4")
        A("s_lshl_b32 s4, 0xffff, s61")
        A("s_mov_b32 s5, 0")
        self.poll(4, "s60", 8, sleep=1)
        self.stamp(12)
        A("s_mul_i32 s60, s%d, 20" % sG)
        A("s_mul_i32 s61, s62, 10")
        A("s_add_u32 s60, s60, s61")
        A("s_lshl_b32 s60, s60, 12")
        A("s_and_b32 s61, s%d, 3" % sW)
        A("s_lshl_b32 s61, s61, 10")
        A("s_add_u32 s60, s60, s61")
        A("s_add_u32 s60, s60, 0x%x" % OB)
        A.vm = 0
        oid = {}
        for s in range(10):
            oid[s] = A.vmem("buffer_load_dwordx4 %s, v7, %s, s60 offen sc1" % (vr(OF + 4 * s, 4), sr(WS, 4)))
            A("s_add_u32 s60, s60, 4096")
        A("s_waitcnt lgkmcnt(0)")
        for s in range(10):
            A.wait_vm(oid[s])
            if s == 7: A("s_waitcnt lgkmcnt(15)")
            if s == 8: A("s_waitcnt lgkmcnt(10)")
            if s == 9: A("s_waitcnt lgkmcnt(0)")
            for nt in range(5):
                acc = vr(AC + 4 * nt, 4)
                A("v_mfma_f32_16x16x32_bf16 %s, %s, %s, %s" % (acc, vr(WP + 20 * (s % 7) + 4 * nt, 4), vr(OF + 4 * s, 4), "0" if s == 0 else acc))
            if s < 3: wfr(s + 7)
            if s == 6: A("s_waitcnt lgkmcnt(10)")
        A("s_and_b32 s61, s%d, 3" % sW)
        A("s_mul_i32 s61, s61, 5120")
        A("s_add_u32 s61, s61, %d" % FINX)
        A("v_add_u32 v8, s61, v7")
        A("s_cmp_ge_u32 s%d, 4" % sW)
        A("s_cbranch_scc1 L_finB")
        for nt in range(5):
            A("ds_write_b128 v8, %s offset:%d" % (vr(AC + 4 * nt, 4), 1024 * nt))
        A("s_waitcnt lgkmcnt(0)")
        A("s_barrier")
        A("s_branch L_done")
        A("L_finB:")
        A("s_mov_b32 s61, 0xffff0000")
        for i in range(10):
            A("v_lshlrev_b32 v%d, 16, v%d" % (76 + 2 * i, 36 + i))
            A("v_and_b32 v%d, s61, v%d" % (77 + 2 * i, 36 + i))
        A("s_barrier")
        for nt in range(5):
            A("ds_read_b128 %s, v8 offset:%d" % (vr(56 + 4 * nt, 4), 1024 * nt))
        A("s_waitcnt lgkmcnt(0)")
        for i in range(10):
            A("v_pk_add_f32 %s, %s, %s" % (vr(AC + 2 * i, 2), vr(AC + 2 * i, 2), vr(56 + 2 * i, 2)))
        for i in range(10):
            A("v_pk_fma_f32 %s, %s, %s, %s" % (vr(AC + 2 * i, 2), vr(AC + 2 * i, 2), vr(16 + 2 * i, 2), vr(76 + 2 * i, 2)))
        for i in range(10):
            A("v_cvt_pk_bf16_f32 v%d, v%d, v%d" % (56 + i, AC + 2 * i, AC + 2 * i + 1))
        for nt in range(5):
            A("buffer_store_dwordx2 %s, v46, %s, s%d offen offset:%d" % (vr(56 + 2 * nt, 2), sr(OUT, 4), sX[10], 32 * nt))
        A("L_done:")
        if self.prof:
            A("s_memrealtime s[90:91]")
            A("s_memtime s[92:93]")
            A("s_waitcnt lgkmcnt(0)")
            A("s_sub_u32 s92, s92, s0")
            A("s_lshl_b32 s60, s2, 3")
            A("s_add_u32 s60, s60, s%d" % sW)
            A("s_lshl_b32 s60, s60, 6")
            A("s_add_u32 s60, s60, 0x%x" % STAMPS)
            for i in range(13): A("v_mov_b32 v%d, s%d" % (16 + i, STAMP0 + 2 * i))
            A("v_mov_b32 v29, s90")
            A("v_mov_b32 v30, s92"); A("v_mov_b32 v31, 0"); A("v_mov_b32 v8, 0")
            A("s_mov_b64 exec, 1")
            for i in range(4):
                A("buffer_store_dwordx4 %s, v8, %s, s60 offen offset:%d" % (vr(16 + 4 * i, 4), sr(WS, 4), 16 * i))
            if self.prof == 2:
                A("v_not_b32 v32, v16")
                A("buffer_atomic_umax v32, v8, %s, 0 offen offset:4" % sr(DBG, 4))
                for n, i in enumerate((1, 2, 3, 4, 5, 6, 7, 8, 9, 10, 12, 13)):
                    A("buffer_atomic_umax v%d, v8, %s, 0 offen offset:%d" % (16 + i, sr(DBG, 4), 8 + 4 * n))
        A("L_end:")
        A("s_endpgm")

    def build(self):
        A = self.A
        self.prologue()
        self.early_duties()
        self.layernorm()
        self.phaseA_setup()
        A("s_and_b32 s60, s%d, 3" % sW)
        A("s_cmp_lg_u32 s60, 3")
        A("s_cbranch_scc1 L_a1Q")
        A("s_cmp_eq_u32 s%d, s%d" % (sW, sLDR))
        A("s_cbranch_scc1 L_a1L")
        A("s_cmp_eq_u32 s%d, 1" % sKVD)
        A("s_cbranch_scc1 L_a1K")
        A("s_cmp_eq_u32 s%d, 2" % sKVD)
        A("s_cbranch_scc1 L_a1V")
        self.a1_variant("I")
        for r in "LKVQ":
            A("L_a1%s:" % r)
            self.a1_variant(r)
        self.zphase()
        self.roleA()
        self.fallback()
        self.roleB()
        self.tail()
        body, npad = pad_hazards(A.lines)
        head = open("recurrent_scan__grouped_kv_mqa__mixer_gmlp__prompt.s.ref").read().split("; Override launch")[0]
        out = head + "; @launch grid=(256,1,1) block=(512,1,1) lds=%d\n" % LDS_BYTES
        out += '.amdgcn_target "amdgcn-amd-amdhsa--gfx950"\n.text\n.globl %s\n.p2align 8\n.type %s,@function\n%s:\n' % (KNAME, KNAME, KNAME)
        out += "\n".join(body) + "\n"
        out += """.section .rodata,"a"
.p2align 6
.amdhsa_kernel %s
  .amdhsa_next_free_vgpr 256
  .amdhsa_next_free_sgpr 102
  .amdhsa_accum_offset 256
  .amdhsa_group_segment_fixed_size 0
  .amdhsa_kernarg_size 104
  .amdhsa_user_sgpr_count 2
  .amdhsa_user_sgpr_kernarg_segment_ptr 1
  .amdhsa_system_sgpr_workgroup_id_x 1
.end_amdhsa_kernel
""" % KNAME
        return out, npad


if __name__ == "__main__":
    ap = argparse.ArgumentParser()
    ap.add_argument("-o", default="k.s")
    ap.add_argument("--prof", type=int, default=0)
    ap.add_argument("--fb", action="store_true")
    a = ap.parse_args()
    txt, npad = Gen(prof=a.prof, force_fb=a.fb).build()
    open(a.o, "w").write(txt)
    print("wrote", a.o, len(txt), "bytes; nop states inserted:", npad)
```
